```python
import torch

def _softmax(x, axis=-1):
    return torch.softmax(x, dim=axis)

def _gelu(x):
    return torch.nn.functional.gelu(x, approximate='tanh')

def _silu(x):
    return torch.nn.functional.silu(x)

def _sigmoid(x):
    return torch.sigmoid(x)

def _layernorm(x, axis=-1, eps=1e-05):
    m = x.mean(dim=axis, keepdim=True)
    v = x.var(dim=axis, keepdim=True, unbiased=False)
    return (x - m) / torch.sqrt(v + eps)

def _scatter_add(tgt, idx, src, axis=0):
    return tgt.clone().index_add_(axis, idx, src)

def _segment_sum(src, seg, n):
    out = torch.zeros((n,) + src.shape[1:], dtype=src.dtype)
    return out.index_add_(0, seg, src)

def _pad(x, pw):
    flat = tuple((v for pair in reversed(pw) for v in pair))
    return torch.nn.functional.pad(x, flat)
kernel_name = 'adaLN_cond__mha_block__glu_gated_glu__prompt'

def setup_inputs():

    _w = lambda a: (lambda t: t.to(torch.bfloat16) if t.is_floating_point() else t)(torch.as_tensor(a))

    def _A_setup():
        B, S, D, H = (1, 2048, 640, 32)
        return {'x': _w((lambda *s: torch.randn(*s, dtype=torch.bfloat16) * 0.05)(B, S, D)), 'wqkv': _w((lambda *s: torch.randn(*s, dtype=torch.bfloat16) * 0.05)(D, 3 * D)), 'wo': _w((lambda *s: torch.randn(*s, dtype=torch.bfloat16) * 0.05)(D, D))}
    _A_in = _A_setup()

    def _B_setup():
        B, S, D, F = (1, 2048, 640, 1728)
        return {'x': _w((lambda *s: torch.randn(*s, dtype=torch.bfloat16) * 0.05)(B, S, D)), 'w_gate': _w((lambda *s: torch.randn(*s, dtype=torch.bfloat16) * 0.05)(D, F)), 'w_up': _w((lambda *s: torch.randn(*s, dtype=torch.bfloat16) * 0.05)(D, F)), 'w_down': _w((lambda *s: torch.randn(*s, dtype=torch.bfloat16) * 0.05)(F, D))}
    _B_in = _B_setup()
    return {'A_x': _A_in['x'], 'A_wqkv': _A_in['wqkv'], 'A_wo': _A_in['wo'], 'B_x': _B_in['x'], 'B_w_gate': _B_in['w_gate'], 'B_w_up': _B_in['w_up'], 'B_w_down': _B_in['w_down'], 'c': _w((lambda *s: torch.randn(*s, dtype=torch.bfloat16) * 0.2)(1, 640) * 8.0), 'w_mod': _w((lambda *s: torch.randn(*s, dtype=torch.bfloat16) * 0.2)(640, 6 * 640) * 640 ** (-0.5) * 8.0)}

def reference(A_x, A_wqkv, A_wo, B_x, B_w_gate, B_w_up, B_w_down, c, w_mod):

    def _A_ref(x, wqkv, wo):
        B, S, D = x.shape
        H = 32
        Dh = D // H
        qkv = (lambda x, *d: x.permute(*d))((x @ wqkv).reshape(B, S, 3, H, Dh), 2, 0, 3, 1, 4)
        q, k, v = (qkv[0], qkv[1], qkv[2])
        scores = torch.einsum('bhqd,bhkd->bhqk', q, k) * Dh ** (-0.5)
        p = _softmax(scores, axis=-1)
        o = torch.einsum('bhqk,bhkd->bhqd', p, v)
        return (lambda x, *d: x.permute(*d))(o, 0, 2, 1, 3).reshape(B, S, D) @ wo

    def _B_ref(x, w_gate, w_up, w_down):
        g = torch.einsum('bsd,df->bsf', x, w_gate)
        u = torch.einsum('bsd,df->bsf', x, w_up)
        h = _sigmoid(g) * u
        return torch.einsum('bsf,fd->bsd', h, w_down)
    x = A_x
    mod = (_silu(c) @ w_mod).reshape(c.shape[0], 6, 1, -1)
    sa, ca, ga, sb, cb, gb = (mod[:, 0].clone(), mod[:, 1].clone(), mod[:, 2].clone(), mod[:, 3].clone(), mod[:, 4].clone(), mod[:, 5].clone())
    h = _layernorm(x, axis=-1) * (1 + ca) + sa
    x = x + ga * _A_ref(h, A_wqkv, A_wo)
    h = _layernorm(x, axis=-1) * (1 + cb) + sb
    x = x + gb * _B_ref(h, B_w_gate, B_w_up, B_w_down)
    return x
```

```python
from dsl import *
import math, struct

S_, D_, H_, F_ = 2048, 640, 32, 1728
WS_FLAGS = 0
WS_MODP  = 0x40000
WS_UV    = 0x50000
WS_ST    = 0x90000
WS_XH    = 0x100000
WS_Q     = 0x400000
WS_KV    = 0x700000
WS_OF    = 0xC00000
WS_X1F   = 0xF00000
WS_HF    = 0x1200000
WS_WOP   = 0x1900000
WS_WDP   = 0x1A00000
WS_WGP   = 0x1D00000
WS_SIZE  = 0x2200000

sWG, sW, sX, sY = 2, 3, 4, 5
SRD_WS, SRD_A, SRD_B, SRD_C = 8, 12, 16, 20
P_X, P_WQKV, P_WO, P_BX, P_WG, P_WU, P_WD, P_C, P_WMOD, P_OUT, P_DBG, P_WS = [64 + 2*i for i in range(12)]

def f2u(x): return struct.unpack('<I', struct.pack('<f', x))[0]
def hx(x): return hex(x & 0xffffffff)

def srd(a, r, ptr, nbytes):
    a(f's_mov_b32 s{r}, s{ptr}')
    a(f's_mov_b32 s{r+1}, s{ptr+1}')
    a(f's_mov_b32 s{r+2}, {hx(nbytes)}')
    a(f's_mov_b32 s{r+3}, 0x20000')

def prologue(a, endlabel):
    a(f's_cmpk_ge_u32 s{sWG}, 256')
    a(f's_cbranch_scc1 {endlabel}')
    a(f's_load_dwordx16 s[64:79], s[0:1], 0')
    a(f's_load_dwordx8 s[80:87], s[0:1], 64')
    a(f'v_lshrrev_b32 v1, 6, v0')
    a(f'v_and_b32 v0, 63, v0')
    a(f'v_readfirstlane_b32 s{sW}, v1')
    a(f's_and_b32 s{sX}, s{sWG}, 7')
    a(f's_lshr_b32 s{sY}, s{sWG}, 3')
    a(f's_waitcnt lgkmcnt(0)')
    srd(a, SRD_WS, P_WS, WS_SIZE)

def descriptor(name, vgpr=256, accum=256):
    return f""".section .rodata,"a"
.p2align 6
.amdhsa_kernel {name}
  .amdhsa_next_free_vgpr {vgpr}
  .amdhsa_next_free_sgpr 102
  .amdhsa_accum_offset {accum}
  .amdhsa_group_segment_fixed_size 0
  .amdhsa_kernarg_size 96
  .amdhsa_user_sgpr_count 2
  .amdhsa_user_sgpr_kernarg_segment_ptr 1
  .amdhsa_system_sgpr_workgroup_id_x 1
.end_amdhsa_kernel
.text
"""

def round_bf16_inplace(a, regs, tmp):
    for i in range(0, len(regs), 2):
        a(f'v_cvt_pk_bf16_f32 v{tmp}, v{regs[i]}, v{regs[i+1]}')
        a(f'v_lshlrev_b32 v{regs[i]}, 16, v{tmp}')
        a(f'v_and_b32 v{regs[i+1]}, 0xffff0000, v{tmp}')
```

```python
import re

def v(a, n=1): return f'v{a}' if n == 1 else f'v[{a}:{a+n-1}]'
def s(a, n=1): return f's{a}' if n == 1 else f's[{a}:{a+n-1}]'

class Asm:
    def __init__(self):
        self.lines = []
        self.vm = 0
        self.lg = 0
        self.vm_done = 0
        self.lg_done = 0
        self.uid = 0
    def __call__(self, text):
        for ln in text.split('\n'):
            ln = ln.strip()
            if not ln: continue
            self.lines.append(ln)
            op = ln.split()[0]
            if op.startswith(('buffer_', 'global_')) and op not in ('buffer_inv', 'buffer_wbl2'):
                self.vm += 1
            elif op in ('buffer_inv', 'buffer_wbl2'):
                self.vm += 1
            elif op.startswith('ds_'):
                self.lg += 1
            elif op == 's_waitcnt':
                m = re.search(r'vmcnt\((\d+)\)', ln)
                if m: self.vm_done = max(self.vm_done, self.vm - int(m.group(1)))
                m = re.search(r'lgkmcnt\((\d+)\)', ln)
                if m: self.lg_done = max(self.lg_done, self.lg - int(m.group(1)))
    def vmem(self, text):
        self(text); return self.vm
    def ds(self, text):
        self(text); return self.lg
    def wait(self, vm=None, lg=None):
        parts = []
        if vm is not None and vm > self.vm_done:
            n = self.vm - vm
            if n <= 63: parts.append(f'vmcnt({n})')
            else: raise Exception('vmcnt overflow %d' % n)
        if lg is not None and lg > self.lg_done:
            n = min(self.lg - lg, 15)
            parts.append(f'lgkmcnt({n})')
        if parts: self('s_waitcnt ' + ' '.join(parts))
    def forget(self):
        pass
    def label(self, name): self.lines.append(name + ':')
    def newlabel(self, base='L'):
        self.uid += 1; return f'{base}_{self.uid}'
    def text(self): return '\n'.join(('' if l.endswith(':') else '    ') + l for l in self.lines) + '\n'

TRANS = ('v_exp_', 'v_log_', 'v_rcp_', 'v_rsq_', 'v_sqrt_', 'v_sin_', 'v_cos_')
def regs_of(tok):
    tok = tok.strip()
    tok = re.sub(r'^-|^\|', '', tok); tok = tok.replace('|', '')
    m = re.match(r'^abs\((.*)\)$', tok)
    if m: tok = m.group(1)
    m = re.match(r'^([vas])(\d+)$', tok)
    if m: return [(m.group(1), int(m.group(2)))]
    m = re.match(r'^([vas])\[(\d+):(\d+)\]$', tok)
    if m: return [(m.group(1), i) for i in range(int(m.group(2)), int(m.group(3))+1)]
    if tok == 'vcc': return [('s', 106), ('s', 107)]
    if tok == 'vcc_lo': return [('s', 106)]
    if tok == 'vcc_hi': return [('s', 107)]
    if tok == 'exec': return [('x', 0)]
    if tok in ('exec_lo', 'exec_hi'): return [('x', 0)]
    if tok == 'm0': return [('m', 0)]
    return []

class I:
    pass
def parse(ln):
    i = I(); i.text = ln
    parts = ln.split(None, 1); op = parts[0]; i.op = op
    rest = parts[1] if len(parts) > 1 else ''
    rest = rest.split(';')[0]
    ops = [x.strip() for x in re.split(r',(?![^\[]*\])', rest)] if rest else []
    if ops:
        last = ops[-1].split()
        mods = last[1:]; ops[-1] = last[0] if last else ''
    else: mods = []
    i.mods = ' '.join(mods); i.ops = ops
    i.mfma = op.startswith(('v_mfma', 'v_smfmac'))
    i.valu = op.startswith('v_') and not i.mfma
    i.trans = op.startswith(TRANS)
    i.vmem = op.startswith(('buffer_', 'global_'))
    i.ds = op.startswith('ds_')
    i.salu = op.startswith('s_')
    i.dpp = '_dpp' in op or 'row_' in i.mods or 'quad_perm' in i.mods
    i.defs = []; i.uses = []; i.srcc = []; i.ab = []; i.stdata = []
    R = [regs_of(o) for o in ops]
    if i.mfma:
        i.passes = 4 if '16x16' in op else 8
        i.defs = R[0]; i.ab = R[1] + R[2]
        if op.startswith('v_smfmac'):
            i.srcc = R[0]; i.ab += R[3]
        else: i.srcc = R[3]
        i.uses = i.ab + i.srcc
    elif i.valu:
        if op.startswith('v_cmpx'):
            i.defs = R[0] + [('x', 0)]; i.uses = sum(R[1:], [])
        elif op.startswith('v_permlane') and 'swap' in op:
            i.defs = R[0] + R[1]; i.uses = R[0] + R[1]
        elif re.match(r'v_(add|sub|subrev|addc|subb)_co', op) or op.startswith(('v_mad_u64', 'v_div_scale')):
            i.defs = R[0] + R[1]; i.uses = sum(R[2:], [])
        elif op == 'v_nop': pass
        else:
            i.defs = R[0]; i.uses = sum(R[1:], [])
            if op.startswith(('v_fmac', 'v_dot2c', 'v_writelane', 'v_mac')) or 'UNUSED_PRESERVE' in i.mods or (i.dpp and op.startswith('v_mov')) or 'fma_mixhi' in op or 'fma_mixlo' in op:
                i.uses += R[0]
            if op.startswith('v_cndmask') and len(ops) == 3: i.uses += regs_of('vcc')
    elif i.vmem:
        lds = ' lds' in (' ' + i.mods + ' ') or '_lds_' in op
        i.ldsdma = lds
        if op in ('buffer_inv', 'buffer_wbl2'): pass
        elif 'load' in op and not lds:
            i.defs = R[0]; i.uses = sum(R[1:], [])
        elif 'load' in op:
            i.uses = sum(R, []) + [('m', 0)]
        elif op.startswith('buffer_'):
            i.stdata = R[0]; i.uses = sum(R, [])
            if 'atomic' in op and 'sc0' in i.mods: i.defs = R[0]
        else:
            if 'atomic' in op and 'sc0' in i.mods:
                i.defs = R[0]; i.uses = sum(R[1:], []); i.stdata = R[2]
            else:
                i.stdata = R[1]; i.uses = sum(R, [])
        if not re.search(r'x3|x4', op): i.stdata = []
    elif i.ds:
        if 'read' in op or 'permute' in op or 'swizzle' in op or '_rtn' in op:
            i.defs = R[0]; i.uses = sum(R[1:], [])
        else: i.uses = sum(R, [])
    elif i.salu:
        if op.startswith(('s_cmp', 's_cbranch', 's_branch', 's_waitcnt', 's_barrier', 's_nop', 's_sleep', 's_setprio', 's_endpgm', 's_setpc', 's_bitcmp')):
            i.uses = sum(R, [])
        else:
            i.defs = R[0] if R else []; i.uses = sum(R[1:], [])
            if 'saveexec' in op: i.defs = i.defs + [('x', 0)]
    i.states = 1
    if op == 's_nop': i.states = int(ops[0], 0) + 1
    return i

def check(lines, trans_states=1, verbose=True):
    ins = [parse(l) for l in lines if not l.endswith(':') and not l.startswith(('.', ';'))]
    probs = []
    for n, c in enumerate(ins):
        dist = 0
        pdist = 0
        cu = set(c.uses); cd = set(c.defs)
        for m in range(n-1, max(-1, n-24), -1):
            p = ins[m]
            pd = set(p.defs)
            need = 0; phys = False
            if p.mfma:
                big = 12 if p.passes == 8 else 8
                if c.mfma:
                    if pd & set(c.ab): need = big
                    elif pd & set(c.srcc):
                        same = (p.defs == c.srcc and p.passes == c.passes)
                        need = 0 if same else (10 if p.passes == 8 else 6)
                    elif pd & cd: need = 0
                elif (c.valu or c.vmem or c.ds) and pd & (cu | cd): need = big
                if c.valu and set(p.srcc) & cd and not (pd & cd): need = max(need, 7 if p.passes == 8 else 3)
                phys = True
            elif p.valu:
                vd = {r for r in pd if r[0] in 'va'}; sd = {r for r in pd if r[0] == 's'}; xd = ('x', 0) in pd
                if c.mfma and vd & cu: need = 2
                if c.mfma and xd: need = 4
                if c.valu:
                    if p.trans and not c.trans and vd & cu: need = max(need, 1)
                    if c.dpp and vd & cu: need = max(need, 2)
                    if c.dpp and xd: need = max(need, 5)
                    if c.op.startswith('v_permlane') and vd & cu: need = max(need, 2)
                    if c.op.startswith('v_permlane') and xd: need = max(need, 4)
                    if c.op.startswith(('v_readlane', 'v_readfirstlane')) and vd & cu: need = max(need, 1)
                    if c.op.startswith(('v_readlane', 'v_readfirstlane', 'v_writelane')) and xd: need = max(need, 4)
                    if sd & cu: need = max(need, 4 if c.op.startswith(('v_readlane', 'v_writelane')) else 2)
                    if ('sdwa' in p.op or 'op_sel' in p.mods and ('mixhi' in p.op or 'mixlo' in p.op)) and vd & (cu | cd): need = max(need, 1)
                if c.vmem and sd & cu: need = max(need, 5)
            elif p.vmem and p.stdata:
                if set(p.stdata) & cd: need = 2 if c.valu else 1
            elif p.salu:
                if ('m', 0) in pd and c.vmem and getattr(c, 'ldsdma', False): need = 1
                if ('m', 0) in pd and c.ds and 'addtid' in c.op: need = 1
            d = pdist if phys else dist
            if need > d:
                probs.append(f'need {need} have {d}: [{p.text}] -> [{c.text}]')
            dist += p.states
            pdist += (trans_states if p.trans else p.states)
    if verbose:
        for x in probs[:40]: print('HAZARD', x)
    return probs
```

```python
from common import *

def silu_pk(a, r, t):
    a(f'v_lshlrev_b32 v{r}, 16, v{r}')
    a(f'v_mul_f32 v{t}, {hx(f2u(-math.log2(math.e)))}, v{r}')
    a(f'v_exp_f32 v{t}, v{t}')
    a(f's_nop 0')
    a(f'v_add_f32 v{t}, 1.0, v{t}')
    a(f'v_rcp_f32 v{t}, v{t}')
    a(f's_nop 0')
    a(f'v_mul_f32 v{r}, v{r}, v{t}')
    a(f'v_cvt_pk_bf16_f32 v{r}, v{r}, 0')
    a(f'v_lshlrev_b32 v{r+1}, 16, v{r}')

def gemv_unit(a, stflag, lds_scratch=0):
    skip = a.newlabel('A_skip')
    a(f's_cmpk_ge_u32 s{sWG}, 240')
    a(f's_cbranch_scc1 {skip}')
    srd(a, SRD_A, P_WMOD, 640*3840*2)
    srd(a, SRD_B, P_C, 1280)
    a(f's_mul_i32 s24, s{sWG}, {(1<<16)//60+1}')
    a(f's_lshr_b32 s24, s24, 16')
    a(f's_mul_i32 s25, s24, 60')
    a(f's_sub_u32 s25, s{sWG}, s25')
    a(f's_mul_i32 s26, s24, {160*7680}')
    a(f's_lshl_b32 s27, s25, 7')
    a(f's_add_u32 s26, s26, s27')
    a(f's_mul_i32 s27, s24, 320')
    a(f'v_lshrrev_b32 v2, 3, v0')
    a(f's_lshl_b32 s28, s{sW}, 3')
    a(f'v_add_u32 v2, s28, v2')
    a(f'v_and_b32 v3, 7, v0')
    a(f'v_mul_u32_u24 v4, 7680, v2')
    a(f'v_lshl_add_u32 v4, v3, 4, v4')
    a(f'v_lshlrev_b32 v5, 1, v2')
    a(f's_add_u32 s29, s26, {64*7680}')
    a(f's_add_u32 s30, s26, {128*7680}')
    for r in (14, 24, 25, 26, 27): a(f'v_mov_b32 v{r}, 0')
    a(f'buffer_load_ushort v10, v5, s[{SRD_B}:{SRD_B+3}], s27 offen')
    a(f'buffer_load_ushort v12, v5, s[{SRD_B}:{SRD_B+3}], s27 offen offset:128')
    a(f'buffer_load_dwordx4 v[16:19], v4, s[{SRD_A}:{SRD_A+3}], s26 offen')
    a(f'buffer_load_dwordx4 v[20:23], v4, s[{SRD_A}:{SRD_A+3}], s29 offen')
    l2 = a.newlabel('A_no3')
    a(f's_cmp_ge_u32 s{sW}, 4')
    a(f's_cbranch_scc1 {l2}')
    a(f'buffer_load_ushort v14, v5, s[{SRD_B}:{SRD_B+3}], s27 offen offset:256')
    a(f'buffer_load_dwordx4 v[24:27], v4, s[{SRD_A}:{SRD_A+3}], s30 offen')
    a.label(l2)
    return skip

def gemv_finish(a, skip, stflag, lds_scratch=0):
    a('s_waitcnt vmcnt(0)')
    for r in (10, 12, 14): silu_pk(a, r, 6)
    for m in range(4):
        for hi in range(2):
            d = 28 + 2*m + hi
            a(f'v_dot2_f32_bf16 v{d}, v{16+m}, v{10+hi}, 0')
    for i, base in ((1, 20), (2, 24)):
        for m in range(4):
            for hi in range(2):
                d = 28 + 2*m + hi
                a(f'v_dot2_f32_bf16 v{d}, v{base+m}, v{10+2*i+hi}, v{d}')
    a('s_nop 2')
    for m in range(8): a(f'v_add_f32_dpp v{28+m}, v{28+m}, v{28+m} row_ror:8 row_mask:0xf bank_mask:0xf')
    a('s_nop 1')
    for m in range(4): a(f'v_permlane16_swap_b32 v{28+m}, v{32+m}')
    for m in range(4): a(f'v_add_f32 v{28+m}, v{28+m}, v{32+m}')
    a('s_nop 1')
    for m in range(2): a(f'v_permlane32_swap_b32 v{28+m}, v{30+m}')
    for m in range(2): a(f'v_add_f32 v{28+m}, v{28+m}, v{30+m}')
    a(f'v_lshlrev_b32 v6, 5, v3')
    a(f'v_and_b32 v7, 16, v0')
    a(f'v_add_u32 v6, v6, v7')
    a(f'v_bfe_u32 v7, v0, 5, 1')
    a(f'v_lshl_add_u32 v6, v7, 3, v6')
    a(f's_lshl_b32 s28, s{sW}, 8')
    a(f's_add_u32 s28, s28, {lds_scratch}')
    a(f'v_add_u32 v6, s28, v6')
    a(f'ds_write_b64 v6, v[28:29]')
    a('s_waitcnt lgkmcnt(0)')
    a('s_barrier')
    l3 = a.newlabel('A_w0')
    a(f's_cmp_lg_u32 s{sW}, 0')
    a(f's_cbranch_scc1 {l3}')
    a(f'v_lshlrev_b32 v6, 2, v0')
    a(f'v_add_u32 v7, {lds_scratch}, v6')
    for i in range(4): a(f'ds_read2st64_b32 v[{28+2*i}:{29+2*i}], v7 offset0:{2*i} offset1:{2*i+1}')
    a(f's_mul_i32 s28, s24, 15360')
    a(f's_lshl_b32 s29, s25, 8')
    a(f's_add_u32 s28, s28, s29')
    a(f's_add_u32 s28, s28, {WS_MODP}')
    a('s_waitcnt lgkmcnt(0)')
    for i in range(1, 8): a(f'v_add_f32 v28, v28, v{28+i}')
    a(f'buffer_store_dword v28, v6, s[{SRD_WS}:{SRD_WS+3}], s28 offen {stflag}')
    a.label(l3)
    a.label(skip)

def xhat_rows(a, stflag):
    srd(a, SRD_C, P_X, S_*D_*2)
    a(f's_lshl_b32 s32, s{sWG}, 3')
    a(f's_add_u32 s32, s32, s{sW}')
    a(f's_mul_i32 s33, s32, 1280')
    a(f'v_lshlrev_b32 v40, 4, v0')
    a(f'v_add_u32 v41, 1024, v40')
    a(f'v_cmp_gt_u32 vcc, 16, v0')
    a(f'v_mov_b32 v42, 0x7f000000')
    a(f's_nop 0')
    a(f'v_cndmask_b32 v41, v42, v41, vcc')
    a(f'buffer_load_dwordx4 v[44:47], v40, s[{SRD_C}:{SRD_C+3}], s33 offen')
    a(f'buffer_load_dwordx4 v[48:51], v41, s[{SRD_C}:{SRD_C+3}], s33 offen')

def xhat_finish(a, stflag):
    a(f's_mov_b32 s34, 0x3f803f80')
    a('s_waitcnt vmcnt(0)')
    a(f'v_dot2_f32_bf16 v52, v44, s34, 0')
    a(f'v_dot2_f32_bf16 v53, v44, v44, 0')
    for r in range(45, 52):
        a(f'v_dot2_f32_bf16 v52, v{r}, s34, v52')
        a(f'v_dot2_f32_bf16 v53, v{r}, v{r}, v53')
    a('s_nop 2')
    for k in (1, 2, 4, 8):
        a(f'v_add_f32_dpp v52, v52, v52 row_ror:{k} row_mask:0xf bank_mask:0xf')
        a(f'v_add_f32_dpp v53, v53, v53 row_ror:{k} row_mask:0xf bank_mask:0xf')
        a('s_nop 0')
    a('s_nop 0')
    a(f'v_permlane16_swap_b32 v52, v53')
    a(f'v_add_f32 v52, v52, v53')
    a(f'v_mov_b32 v53, v52')
    a('s_nop 1')
    a(f'v_permlane32_swap_b32 v52, v53')
    a(f'v_add_f32 v52, v52, v53')
    a('s_nop 0')
    a(f'v_readlane_b32 s35, v52, 0')
    a(f'v_readlane_b32 s36, v52, 16')
    a(f'v_mov_b32 v54, {hx(f2u(1/640))}')
    a('s_nop 0')
    a(f'v_mul_f32 v52, s35, v54')
    a(f'v_mul_f32 v53, s36, v54')
    a(f'v_fma_f32 v53, -v52, v52, v53')
    a(f'v_max_f32 v53, 0, v53')
    a(f'v_add_f32 v53, {hx(f2u(1e-5))}, v53')
    a(f'v_rsq_f32 v53, v53')
    a('s_nop 0')
    a(f'v_mul_f32 v52, v52, v53')
    for r in range(44, 52):
        a(f'v_lshlrev_b32 v54, 16, v{r}')
        a(f'v_and_b32 v55, 0xffff0000, v{r}')
        a(f'v_fma_f32 v54, v54, v53, -v52')
        a(f'v_fma_f32 v55, v55, v53, -v52')
        a(f'v_cvt_pk_f16_f32 v{r}, v54, v55')
    a(f's_lshr_b32 s35, s32, 5')
    a(f's_mul_i32 s35, s35, 40960')
    a(f's_and_b32 s36, s32, 31')
    a(f's_lshl_b32 s36, s36, 4')
    a(f's_add_u32 s35, s35, s36')
    a(f's_add_u32 s35, s35, {WS_XH}')
    a(f'v_lshlrev_b32 v40, 9, v0')
    a(f'v_add_u32 v41, {64*512}, v40')
    a(f'v_cndmask_b32 v41, v42, v41, vcc')
    a(f'buffer_store_dwordx4 v[44:47], v40, s[{SRD_WS}:{SRD_WS+3}], s35 offen {stflag}')
    a(f'buffer_store_dwordx4 v[48:51], v41, s[{SRD_WS}:{SRD_WS+3}], s35 offen {stflag}')

def phase_a_standalone(a):
    xhat_rows(a, '')
    skip = gemv_unit(a, '')
    gemv_finish(a, skip, '')
    xhat_finish(a, '')
```

```python
from common import *

QSCALE = math.log2(math.e) / math.sqrt(20.0)
XH0, ACC_S, ACC_K, BF0, GS0, TMP0, STA0 = 16, 96, 128, 160, 176, 208, 216
A_T, A_GS, A_WD, A_XH, A_EX = 2, 6, 7, 8, 9
sMT, sNT, sRG, sKH, sTY = 24, 25, 26, 27, 28
GS_LDS = (2*20480 + 16384, 3*20480 + 16384)

def piece_addr(i):
    return (i & 3)*20480 + (i >> 2)*4096

def b_ids(a, idle):
    a(f's_lshr_b32 s{sMT}, s{sX}, 1')
    a(f's_lshl_b32 s{sMT}, s{sMT}, 2')
    a(f's_and_b32 s29, s{sY}, 3')
    a(f's_add_u32 s{sMT}, s{sMT}, s29')
    a(f's_and_b32 s{sNT}, s{sX}, 1')
    a(f's_lshl_b32 s{sNT}, s{sNT}, 3')
    a(f's_lshr_b32 s29, s{sY}, 2')
    a(f's_add_u32 s{sNT}, s{sNT}, s29')
    a(f's_cmp_eq_u32 s{sNT}, 15')
    a(f's_cbranch_scc1 {idle}')
    a(f's_and_b32 s{sRG}, s{sW}, 3')
    a(f's_lshr_b32 s{sKH}, s{sW}, 2')
    a(f's_mul_i32 s{sTY}, s{sNT}, 52')
    a(f's_lshr_b32 s{sTY}, s{sTY}, 8')

def w_round(a, c):
    a(f's_add_u32 s34, s{sRG}, {4*c}')
    a(f's_cmp_ge_u32 s34, 10')
    a(f's_cselect_b32 s35, s33, s32')
    a(f's_mul_i32 s34, s34, {32*3840}')
    a(f's_add_u32 s34, s34, s35')
    tok = None
    for q in range(4):
        a(f's_add_u32 m0, s31, {c*4096 + q*1024}')
        if q: a(f's_add_u32 s34, s34, {8*3840}')
        else: a('s_nop 0')
        tok = a.vmem(f'buffer_load_dwordx4 v{A_WD}, s[{SRD_A}:{SRD_A+3}], s34 offen lds')
    return tok

def b_setup_addrs(a):
    srd(a, SRD_A, P_WQKV, 640*1920*2)
    a(f'v_lshrrev_b32 v1, 3, v0')
    a(f'v_mul_u32_u24 v{A_WD}, 3840, v1')
    a(f'v_bfe_u32 v1, v0, 4, 1')
    a(f'v_lshlrev_b32 v1, 2, v1')
    a(f'v_and_b32 v14, 7, v0')
    a(f'v_xor_b32 v1, v1, v14')
    a(f'v_lshl_add_u32 v{A_WD}, v1, 4, v{A_WD}')
    a(f's_mul_i32 s30, s{sKH}, {320*3840}')
    a(f's_lshl_b32 s29, s{sNT}, 8')
    a(f's_add_u32 s30, s30, s29')
    a(f's_lshl_b32 s29, s{sKH}, 7')
    a(f's_add_u32 s33, s30, s29')
    a(f's_sub_u32 s33, s33, {10*32*3840}')
    a(f's_xor_b32 s29, s29, 128')
    a(f's_add_u32 s32, s30, s29')
    a(f's_mul_i32 s31, s{sW}, 20480')

def b_setup_reads(a):
    a(f'v_bfe_u32 v1, v0, 2, 2')
    a(f'v_lshrrev_b32 v10, 5, v0')
    a(f'v_lshl_add_u32 v11, v10, 3, v1')
    a(f'v_lshlrev_b32 v11, 7, v11')
    a(f'v_lshrrev_b32 v1, 1, v1')
    a(f'v_lshlrev_b32 v1, 6, v1')
    a(f'v_add_u32 v11, v11, v1')
    a(f'v_bfe_u32 v1, v0, 4, 1')
    a(f'v_lshl_add_u32 v11, v1, 5, v11')
    a(f'v_and_b32 v1, 3, v0')
    a(f'v_lshl_add_u32 v11, v1, 3, v11')
    a(f's_mul_i32 s29, s{sKH}, 81920')
    a(f'v_add_u32 v{A_T}, s29, v11')
    a(f'v_xor_b32 v{A_T+1}, 64, v{A_T}')
    a(f'v_add_u32 v{A_T+2}, 61440, v{A_T}')
    a(f'v_add_u32 v{A_T+3}, 61440, v{A_T+1}')
    a(f's_mul_i32 s29, s{sKH}, {GS_LDS[1]-GS_LDS[0]}')
    a(f's_add_u32 s29, s29, {GS_LDS[0]}')
    a(f'v_lshlrev_b32 v10, 6, v10')
    a(f'v_add_u32 v{A_GS}, s29, v10')
    a(f'v_lshlrev_b32 v{A_EX}, 4, v0')

def b_store_addrs(a):
    lv = a.newlabel('B_av'); le = a.newlabel('B_ae')
    a(f's_lshr_b32 s36, s{sMT}, 1')
    a(f's_and_b32 s37, s{sMT}, 1')
    a(f's_lshl_b32 s37, s37, 2')
    a(f's_add_u32 s37, s37, s{sRG}')
    a(f'v_lshrrev_b32 v10, 5, v0')
    a(f'v_and_b32 v11, 31, v0')
    a(f's_cmp_eq_u32 s{sTY}, 2')
    a(f's_cbranch_scc1 {lv}')
    a(f's_lshl_b32 s38, 10240, s{sTY}')
    a(f's_mul_i32 s39, s{sTY}, {WS_KV-WS_Q}')
    a(f's_add_u32 s39, s39, {WS_Q}')
    a(f's_mul_i32 s36, s36, s38')
    a(f's_add_u32 s39, s39, s36')
    a(f's_lshl_b32 s38, s38, 3')
    a(f'v_and_b32 v12, 0x13, v11')
    a(f'v_bfe_u32 v13, v11, 2, 1')
    a(f'v_lshl_or_b32 v12, v13, 3, v12')
    a(f'v_bfe_u32 v13, v11, 3, 1')
    a(f'v_lshl_or_b32 v12, v13, 2, v12')
    a(f's_cmp_eq_u32 s{sTY}, 0')
    a(f's_cselect_b64 vcc, -1, 0')
    a(f'v_cndmask_b32 v11, v12, v11, vcc')
    a(f'v_lshlrev_b32 v11, 4, v11')
    a(f's_lshl_b32 s40, s37, 10')
    a(f'v_add_u32 v12, s40, v11')
    a(f's_lshr_b32 s40, s37, 1')
    a(f's_lshl_b32 s40, s40, 9')
    a(f's_and_b32 s41, s37, 1')
    a(f's_lshl_b32 s41, s41, 3')
    a(f's_add_u32 s40, s40, s41')
    a(f's_add_u32 s40, s40, 8192')
    a(f'v_add_u32 v13, s40, v11')
    a(f's_mul_i32 s40, s{sTY}, 5')
    a(f's_sub_u32 s40, s{sNT}, s40')
    a(f's_lshl_b32 s40, s40, 5')
    a(f's_lshl_b32 s41, s{sKH}, 4')
    a(f's_add_u32 s40, s40, s41')
    a(f'v_add_u32 v10, s40, v10')
    for n in range(8):
        d = STA0 + n
        a(f'v_add_u32 v14, {2*n}, v10')
        a(f'v_mul_u32_u24 v15, 52429, v14')
        a(f'v_lshrrev_b32 v15, 18, v15')
        a(f'v_mul_u32_u24 v1, 5, v15')
        a(f'v_sub_u32 v14, v14, v1')
        a(f'v_and_b32 v1, 1, v14')
        a(f'v_lshl_add_u32 v{d}, v1, 3, v12')
        a(f'v_lshrrev_b32 v1, 1, v14')
        a(f'v_cmp_eq_u32 vcc, 4, v14')
        a(f'v_lshl_add_u32 v{d}, v1, 9, v{d}')
        a(f'v_mul_lo_u32 v15, v15, s38')
        a(f'v_cndmask_b32 v{d}, v{d}, v13, vcc')
        a(f'v_add_u32 v{d}, v{d}, v15')
    a(f's_branch {le}')
    a.label(lv)
    a(f's_mul_i32 s36, s36, 20480')
    a(f's_mul_i32 s40, s37, 1280')
    a(f's_add_u32 s39, s36, s40')
    a(f's_add_u32 s39, s39, {WS_KV + 10240}')
    a(f's_sub_u32 s40, s{sNT}, 10')
    a(f's_lshl_b32 s40, s40, 7')
    a(f's_lshl_b32 s41, s{sKH}, 6')
    a(f's_add_u32 s40, s40, s41')
    a(f's_mov_b32 s38, 163840')
    a(f'v_mul_u32_u24 v10, 320, v10')
    for n in range(2, 8): a(f'v_mov_b32 v{STA0+n}, 0x7f000000')
    for T in range(2):
        d = STA0 + T
        a(f'v_add_u32 v14, s40, v11')
        if T: a(f'v_add_u32 v14, 32, v14')
        a(f'v_mul_u32_u24 v15, 52429, v14')
        a(f'v_lshrrev_b32 v15, 20, v15')
        a(f'v_mul_u32_u24 v1, 20, v15')
        a(f'v_sub_u32 v14, v14, v1')
        a(f'v_lshl_add_u32 v{d}, v14, 4, v10')
        a(f'v_mul_lo_u32 v15, v15, s38')
        a(f'v_add_u32 v{d}, v{d}, v15')
    a.label(le)

def gs_issue(a, ldflag):
    a(f's_lshl_b32 s29, s{sRG}, 6')
    a(f'v_add_u32 v10, s29, v0')
    a(f'v_lshrrev_b32 v11, 2, v10')
    a(f'v_lshlrev_b32 v11, 5, v11')
    a(f'v_and_b32 v12, 1, v10')
    a(f'v_lshl_add_u32 v11, v12, 4, v11')
    a(f'v_bfe_u32 v12, v10, 1, 1')
    a(f'v_xor_b32 v13, 1, v12')
    a(f'v_mul_u32_u24 v13, 2560, v13')
    a(f'v_add_u32 v11, v11, v13')
    a(f'v_cmp_gt_u32 vcc, 160, v10')
    a(f'v_mov_b32 v13, 0x7f000000')
    a(f's_mul_i32 s29, s{sKH}, 1280')
    a(f'v_cndmask_b32 v11, v13, v11, vcc')
    a(f's_add_u32 s29, s29, {WS_MODP}')
    tok = None
    for p in range(4):
        tok = a.vmem(f'buffer_load_dwordx4 {v(GS0+4*p,4)}, v11, s[{SRD_WS}:{SRD_WS+3}], s29 offen {ldflag}')
        if p < 3: a(f's_add_u32 s29, s29, 15360')
    return tok

def gs_build(a):
    for i in range(4):
        a(f'v_add_f32 v{GS0+i}, v{GS0+i}, v{GS0+4+i}')
        a(f'v_add_f32 v{GS0+8+i}, v{GS0+8+i}, v{GS0+12+i}')
    for i in range(4): a(f'v_add_f32 v{GS0+i}, v{GS0+i}, v{GS0+8+i}')
    round_bf16_inplace(a, [GS0+i for i in range(4)], 13)
    a(f'v_xor_b32 v12, 1, v12')
    a(f'v_cvt_f32_u32 v12, v12')
    for i in range(4): a(f'v_add_f32 v{GS0+i}, v{GS0+i}, v12')
    round_bf16_inplace(a, [GS0+i for i in range(4)], 13)
    a(f's_cmp_eq_u32 s{sTY}, 0')
    a(f's_cselect_b32 s29, {hx(f2u(QSCALE))}, 1.0')
    for i in range(4): a(f'v_mul_f32 v{GS0+i}, s29, v{GS0+i}')
    a(f's_mul_i32 s29, s{sKH}, {GS_LDS[1]-GS_LDS[0]}')
    a(f's_add_u32 s29, s29, {GS_LDS[0]}')
    a(f'v_lshl_add_u32 v11, v10, 4, s29')
    a(f'v_cmp_gt_u32 vcc, 160, v10')
    a(f's_and_saveexec_b64 s[40:41], vcc')
    a(f'ds_write_b128 v11, {v(GS0,4)}')
    a(f's_mov_b64 exec, s[40:41]')

def tr_issue(a, phase, ks):
    i = (ks >> 1) + (10 if phase == 2 else 0)
    off = piece_addr(i) + (ks & 1)*2048
    hi = 0
    if (i & 3) == 3: hi = 2; off -= 61440
    b = BF0 + 8*(ks & 1)
    tok = None
    for T in range(2):
        for h in range(2):
            tok = a.ds(f'ds_read_b64_tr_b16 {v(b+4*T+2*h,2)}, v{A_T+hi+T} offset:{off+512*h}')
    return tok

def gs_read(a, ks):
    b = GS0 + 16*(ks & 1); tok = None
    for q in range(4): tok = a.ds(f'ds_read_b128 {v(b+4*q,4)}, v{A_GS} offset:{ks*128+16*q}')
    return tok

def prep_ops(ks):
    b = GS0 + 16*(ks & 1); x = XH0 + 4*ks
    mix = [f'v_fma_mix_f32 v{TMP0+j}, v{x+(j>>1)}, v{b+j}, v{b+8+j} op_sel:[{j&1},0,0] op_sel_hi:[1,0,0]' for j in range(8)]
    cvt = [f'v_cvt_pk_bf16_f32 v{x+m}, v{TMP0+2*m}, v{TMP0+2*m+1}' for m in range(4)]
    return mix, cvt

def mfma_b(isv, acc, ks, T, first):
    w = v(BF0 + 8*(ks & 1) + 4*T, 4); h = v(XH0 + 4*ks, 4)
    A, B = (h, w) if isv else (w, h)
    c = '0' if first else v(acc + 16*T, 16)
    return f'v_mfma_f32_32x32x16_bf16 {v(acc+16*T,16)}, {A}, {B}, {c}'

def b_kloop(a, isv, xtok, rtok, stflag):
    a.wait(vm=rtok[0]); a('s_waitcnt lgkmcnt(0)'); a('s_barrier')
    g0 = gs_read(a, 0); t = {0: tr_issue(a, 1, 0)}; g = {1: gs_read(a, 1)}
    a.wait(vm=xtok[0], lg=g0)
    mix, cvt = prep_ops(0)
    for m in mix + cvt: a(m)
    for ks in range(20):
        a.wait(lg=t[ks])
        if ks == 0: a('s_nop 0')
        a(mfma_b(isv, ACC_S, ks, 0, ks == 0))
        if ks in (7, 15):
            a.wait(vm=rtok[(ks+1)//8]); a('s_barrier')
        if ks < 19:
            t[ks+1] = tr_issue(a, 1, ks+1)
            mix, cvt = prep_ops(ks+1)
            a.wait(vm=xtok[ks+1], lg=g[ks+1])
            for m in mix[:6]: a(m)
            a(mfma_b(isv, ACC_S, ks, 1, ks == 0))
            for m in mix[6:]: a(m)
            for m in cvt: a(m)
            if ks < 18: g[ks+2] = gs_read(a, ks+2)
            else: a('s_nop 0')
        else:
            a(mfma_b(isv, ACC_S, ks, 1, False))
    a('s_waitcnt vmcnt(0)'); a('s_barrier')
    t = {0: tr_issue(a, 2, 0)}
    w_round(a, 4)
    a(f'v_add_u32 v1, s31, v{A_EX}')
    a(f's_xor_b32 s29, s{sW}, 4')
    a(f's_mul_i32 s29, s29, 20480')
    a(f'v_add_u32 v{A_EX}, s29, v{A_EX}')
    rx = None
    for ks in range(20):
        a.wait(lg=t[ks])
        a(mfma_b(isv, ACC_K, ks, 0, ks == 0))
        if ks == 11:
            a('s_waitcnt vmcnt(0) lgkmcnt(0)'); a('s_barrier')
        if ks < 19: t[ks+1] = tr_issue(a, 2, ks+1)
        a(mfma_b(isv, ACC_K, ks, 1, ks == 0))
        if 1 <= ks <= 8: a(f'ds_write_b128 v1, {v(ACC_S+4*(ks-1),4)} offset:{1024*(ks-1)}')
        if 11 <= ks <= 18: rx = a.ds(f'ds_read_b128 {v(ACC_S+4*(ks-11),4)}, v{A_EX} offset:{1024*(ks-11)}')
    a.wait(lg=rx)
    a('s_nop 9')
    for T in range(2):
        if T == 1: a('s_nop 1')
        for r in range(16): a(f'v_add_f32 v{ACC_K+16*T+r}, v{ACC_K+16*T+r}, v{ACC_S+16*T+r}')
        for r in range(8): a(f'v_cvt_pk_bf16_f32 v{XH0+8*T+r}, v{ACC_K+16*T+2*r}, v{ACC_K+16*T+2*r+1}')
        if isv:
            for u in range(2): a(f'buffer_store_dwordx4 {v(XH0+8*T+4*u,4)}, v{STA0+T}, s[{SRD_WS}:{SRD_WS+3}], s39 offen offset:{640*u} {stflag}')
        else:
            for q in range(4): a(f'buffer_store_dwordx2 {v(XH0+8*T+2*q,2)}, v{STA0+4*T+q}, s[{SRD_WS}:{SRD_WS+3}], s39 offen {stflag}')

def phase_b_standalone(a, end):
    b_ids(a, end)
    gt = gs_issue(a, '')
    b_setup_addrs(a)
    a(f's_lshl_b32 s42, s{sMT}, 2')
    a(f's_add_u32 s42, s42, s{sRG}')
    a(f's_mul_i32 s42, s42, 40960')
    a(f's_mul_i32 s29, s{sKH}, 20480')
    a(f's_add_u32 s42, s42, s29')
    a(f's_add_u32 s42, s42, {WS_XH}')
    a(f'v_lshlrev_b32 v{A_XH}, 4, v0')
    xtok = {}; rtok = {}
    def xh(lo, hi):
        for ks in range(lo, hi):
            xtok[ks] = a.vmem(f'buffer_load_dwordx4 {v(XH0+4*ks,4)}, v{A_XH}, s[{SRD_WS}:{SRD_WS+3}], s42 offen offset:{(ks&3)*1024}')
            if ks & 3 == 3: a(f's_add_u32 s42, s42, 4096')
    xh(0, 4); rtok[0] = w_round(a, 0); xh(4, 12); rtok[1] = w_round(a, 1); xh(12, 20)
    rtok[2] = w_round(a, 2); rtok[3] = w_round(a, 3)
    a.wait(vm=gt)
    gs_build(a)
    b_setup_reads(a)
    b_store_addrs(a)
    lv = a.newlabel('B_v')
    a(f's_cmp_eq_u32 s{sTY}, 2')
    a(f's_cbranch_scc1 {lv}')
    st = (a.vm, a.lg, a.vm_done, a.lg_done)
    b_kloop(a, False, xtok, rtok, '')
    a(f's_branch {end}')
    a.label(lv)
    a.vm, a.lg, a.vm_done, a.lg_done = st
    b_kloop(a, True, xtok, rtok, '')
```

```python
import sys
from common import *
import phase_a, phase_b
NAME = 'adaLN_cond__mha_block__glu_gated_glu__prompt'
HEADER = open('cdna_kernels/' + NAME + '.s.ref').read().split('; Override launch')[0]

def kernel(name, body):
    a = Asm(); a.uid = abs(hash(name)) % 1000 * 1000
    end = name + '_end'
    prologue(a, end)
    body(a, end)
    a.label(end)
    a('s_endpgm')
    probs = check(a.lines, trans_states=2)
    if probs: print(name, len(probs), 'hazards')
    return f'.globl {name}\n.p2align 8\n.type {name},@function\n{name}:\n' + a.text() + descriptor(name)

def build_list(kernels):
    out = HEADER
    for name, body, lds in kernels: out += f'; @launch kernel={name} grid=(256,1,1) block=(512,1,1) lds={lds}\n'
    out += '.amdgcn_target "amdgcn-amd-amdhsa--gfx950"\n.text\n'
    for name, body, lds in kernels: out += kernel(name, body)
    return out

def all_kernels():
    ks = [('pa_kernel', lambda a, e: phase_a.phase_a_standalone(a), 163840),
          ('pb_kernel', phase_b.phase_b_standalone, 163840)]
    for mod, nm in (('phase_p', 'pp'), ('phase_c', 'pc'), ('phase_df', 'pd'), ('phase_e', 'pe'), ('phase_df', 'pf')):
        try: m = __import__(mod)
        except ImportError: break
        ks.append((nm + '_kernel', getattr(m, 'standalone_' + nm), 163840))
    return ks

if __name__ == '__main__':
    open(sys.argv[1], 'w').write(build_list(all_kernels()))
```

```python
from dsl import *
import math, struct

S_, D_, H_, F_ = 2048, 640, 32, 1728
WS_FLAGS = 0
WS_MODP  = 0x40000
WS_MODF  = 0x48000
WS_UV    = 0x50000
WS_ST    = 0x90000
WS_XH    = 0x100000
WS_Q     = 0x400000
WS_KV    = 0x700000
WS_OF    = 0xC00000
WS_X1F   = 0xF00000
WS_HF    = 0x1200000
WS_WOP   = 0x1900000
WS_WDP   = 0x1A00000
WS_WGP   = 0x1D00000
WS_SIZE  = 0x2400000

sWG, sW, sX, sY = 2, 3, 4, 5
SRD_WS, SRD_A, SRD_B, SRD_C = 8, 12, 16, 20
P_X, P_WQKV, P_WO, P_BX, P_WG, P_WU, P_WD, P_C, P_WMOD, P_OUT, P_DBG, P_WS = [64 + 2*i for i in range(12)]

def f2u(x): return struct.unpack('<I', struct.pack('<f', x))[0]
def hx(x): return hex(x & 0xffffffff)

def srd(a, r, ptr, nbytes):
    a(f's_mov_b32 s{r}, s{ptr}')
    a(f's_mov_b32 s{r+1}, s{ptr+1}')
    a(f's_mov_b32 s{r+2}, {hx(nbytes)}')
    a(f's_mov_b32 s{r+3}, 0x20000')

def prologue(a, endlabel):
    a(f's_cmpk_ge_u32 s{sWG}, 256')
    a(f's_cbranch_scc1 {endlabel}')
    a(f's_load_dwordx16 s[64:79], s[0:1], 0')
    a(f's_load_dwordx8 s[80:87], s[0:1], 64')
    a(f'v_lshrrev_b32 v1, 6, v0')
    a(f'v_and_b32 v0, 63, v0')
    a(f'v_readfirstlane_b32 s{sW}, v1')
    a(f's_and_b32 s{sX}, s{sWG}, 7')
    a(f's_lshr_b32 s{sY}, s{sWG}, 3')
    a(f's_waitcnt lgkmcnt(0)')
    srd(a, SRD_WS, P_WS, WS_SIZE)

def descriptor(name, vgpr=256, accum=256):
    return f""".section .rodata,"a"
.p2align 6
.amdhsa_kernel {name}
  .amdhsa_next_free_vgpr {vgpr}
  .amdhsa_next_free_sgpr 102
  .amdhsa_accum_offset {accum}
  .amdhsa_group_segment_fixed_size 0
  .amdhsa_kernarg_size 96
  .amdhsa_user_sgpr_count 2
  .amdhsa_user_sgpr_kernarg_segment_ptr 1
  .amdhsa_system_sgpr_workgroup_id_x 1
.end_amdhsa_kernel
.text
"""

def round_bf16_inplace(a, regs, tmp):
    for i in range(0, len(regs), 2):
        a(f'v_cvt_pk_bf16_f32 v{tmp}, v{regs[i]}, v{regs[i+1]}')
        a(f'v_lshlrev_b32 v{regs[i]}, 16, v{tmp}')
        a(f'v_and_b32 v{regs[i+1]}, 0xffff0000, v{tmp}')

PROF = dict(on=False, clock='s_memrealtime', n=0)
WS_PROF = 0x2200000
def stamp(a, name=None):
    if not PROF['on']: return
    if PROF.get('only') and name not in PROF['only']: return
    i = PROF['n']; PROF['n'] += 1
    assert i < 7, 'too many stamps'
    a(f"{PROF['clock']} s[{88+2*i}:{89+2*i}]")
    PROF.setdefault('names', []).append(name)
def stamp_flush(a, slot):
    if not PROF['on']: return
    n = PROF['n']; PROF['n'] = 0
    a('s_waitcnt lgkmcnt(0)')
    a(f's_lshl3_add_u32 s28, s{sWG}, s{sW}')
    a(f's_lshl_b32 s28, s28, 5')
    a(f's_add_u32 s28, s28, {WS_PROF + slot*65536}')
    a('v_mov_b32 v1, 0')
    for i in range(8): a(f'v_mov_b32 v{8+i}, s{88+2*i}' if i < n else f'v_mov_b32 v{8+i}, 0')
    a('s_mov_b64 exec, 1')
    a(f'buffer_store_dwordx4 v[8:11], v1, s[{SRD_WS}:{SRD_WS+3}], s28 offen')
    a(f'buffer_store_dwordx4 v[12:15], v1, s[{SRD_WS}:{SRD_WS+3}], s28 offen offset:16')

F_QKV, F_PACK, F_MODF, F_ATT, F_D, F_E = range(6)
def flag_off(sync): return WS_FLAGS + sync*256*128
SPIN_MAX = 1 << 18

def signal(a, sync, sidx):
    l = a.newlabel('sig')
    a(f's_cmp_lg_u32 s{sW}, 0')
    a(f's_cbranch_scc1 {l}')
    a(f's_lshl_b32 s60, s{sidx}, 7')
    a(f's_add_u32 s60, s60, {flag_off(sync)}')
    a(f'v_mov_b32 v254, 0')
    a(f'v_mov_b32 v255, 1')
    a(f's_mov_b64 exec, 1')
    a(f'buffer_store_dword v255, v254, s[{SRD_WS}:{SRD_WS+3}], s60 offen sc1')
    a(f's_mov_b64 exec, -1')
    a.label(l)
    a.vm -= 1

def poll(a, items, wave=0, sleep=0):
    l = a.newlabel('poll'); le = a.newlabel('polle')
    vm0 = a.vm
    a(f's_cmp_lg_u32 s{sW}, {wave}')
    a(f's_cbranch_scc1 {le}')
    a(f's_mov_b32 s61, 0')
    a.label(l)
    for vo, so, d in items: a(f'buffer_load_dword v{d}, v{vo}, s[{SRD_WS}:{SRD_WS+3}], {so} offen sc1')
    a(f's_add_u32 s61, s61, 1')
    a(f's_cmp_gt_u32 s61, {SPIN_MAX}')
    saved = a.vm_done
    a('s_waitcnt vmcnt(0)')
    a.vm_done = saved
    a(f's_cbranch_scc1 {le}')
    d0 = items[0][2]
    for vo, so, d in items[1:]: a(f'v_and_b32 v{d0}, v{d0}, v{d}')
    a(f'v_cmp_ne_u32 vcc, 1, v{d0}')
    if sleep: a(f's_sleep {sleep}')
    a(f's_cbranch_vccnz {l}')
    a.label(le)
    a.vm = vm0
```

```python
from common import *

QSCALE = math.log2(math.e) / math.sqrt(20.0)
XH0, ACC_S, ACC_K, BF0, GS0, TMP0, STA0 = 16, 96, 128, 160, 176, 208, 216
A_T, A_GS, A_WD, A_XH, A_EX = 2, 6, 7, 8, 9
sMT, sNT, sRG, sKH, sTY = 24, 25, 26, 27, 28
GS_LDS = (2*20480 + 16384, 3*20480 + 16384)

def piece_addr(i):
    return (i & 3)*20480 + (i >> 2)*4096

def b_ids(a, idle):
    a(f's_lshr_b32 s{sMT}, s{sX}, 1')
    a(f's_lshl_b32 s{sMT}, s{sMT}, 2')
    a(f's_and_b32 s29, s{sY}, 3')
    a(f's_add_u32 s{sMT}, s{sMT}, s29')
    a(f's_and_b32 s{sNT}, s{sX}, 1')
    a(f's_lshl_b32 s{sNT}, s{sNT}, 3')
    a(f's_lshr_b32 s29, s{sY}, 2')
    a(f's_add_u32 s{sNT}, s{sNT}, s29')
    a(f's_cmp_eq_u32 s{sNT}, 15')
    a(f's_cbranch_scc1 {idle}')
    a(f's_and_b32 s{sRG}, s{sW}, 3')
    a(f's_lshr_b32 s{sKH}, s{sW}, 2')
    a(f's_mul_i32 s{sTY}, s{sNT}, 52')
    a(f's_lshr_b32 s{sTY}, s{sTY}, 8')

def w_round(a, c):
    a(f's_add_u32 s34, s{sRG}, {4*c}')
    a(f's_cmp_ge_u32 s34, 10')
    a(f's_cselect_b32 s35, s33, s32')
    a(f's_mul_i32 s34, s34, {32*3840}')
    a(f's_add_u32 s34, s34, s35')
    tok = None
    for q in range(4):
        a(f's_add_u32 m0, s31, {c*4096 + q*1024}')
        if q: a(f's_add_u32 s34, s34, {8*3840}')
        else: a('s_nop 0')
        tok = a.vmem(f'buffer_load_dwordx4 v{A_WD}, s[{SRD_A}:{SRD_A+3}], s34 offen lds')
    return tok

def b_setup_addrs(a):
    srd(a, SRD_A, P_WQKV, 640*1920*2)
    a(f'v_lshrrev_b32 v1, 3, v0')
    a(f'v_mul_u32_u24 v{A_WD}, 3840, v1')
    a(f'v_bfe_u32 v1, v0, 4, 1')
    a(f'v_lshlrev_b32 v1, 2, v1')
    a(f'v_and_b32 v14, 7, v0')
    a(f'v_xor_b32 v1, v1, v14')
    a(f'v_lshl_add_u32 v{A_WD}, v1, 4, v{A_WD}')
    a(f's_mul_i32 s30, s{sKH}, {320*3840}')
    a(f's_lshl_b32 s29, s{sNT}, 8')
    a(f's_add_u32 s30, s30, s29')
    a(f's_lshl_b32 s29, s{sKH}, 7')
    a(f's_add_u32 s33, s30, s29')
    a(f's_sub_u32 s33, s33, {10*32*3840}')
    a(f's_xor_b32 s29, s29, 128')
    a(f's_add_u32 s32, s30, s29')
    a(f's_mul_i32 s31, s{sW}, 20480')

def b_setup_reads(a):
    a(f'v_bfe_u32 v1, v0, 2, 2')
    a(f'v_lshrrev_b32 v10, 5, v0')
    a(f'v_lshl_add_u32 v11, v10, 3, v1')
    a(f'v_lshlrev_b32 v11, 7, v11')
    a(f'v_lshrrev_b32 v1, 1, v1')
    a(f'v_lshlrev_b32 v1, 6, v1')
    a(f'v_add_u32 v11, v11, v1')
    a(f'v_bfe_u32 v1, v0, 4, 1')
    a(f'v_lshl_add_u32 v11, v1, 5, v11')
    a(f'v_and_b32 v1, 3, v0')
    a(f'v_lshl_add_u32 v11, v1, 3, v11')
    a(f's_mul_i32 s29, s{sKH}, 81920')
    a(f'v_add_u32 v{A_T}, s29, v11')
    a(f'v_xor_b32 v{A_T+1}, 64, v{A_T}')
    a(f'v_add_u32 v{A_T+2}, 61440, v{A_T}')
    a(f'v_add_u32 v{A_T+3}, 61440, v{A_T+1}')
    a(f's_mul_i32 s29, s{sKH}, {GS_LDS[1]-GS_LDS[0]}')
    a(f's_add_u32 s29, s29, {GS_LDS[0]}')
    a(f'v_lshlrev_b32 v10, 6, v10')
    a(f'v_add_u32 v{A_GS}, s29, v10')
    a(f'v_lshlrev_b32 v{A_EX}, 4, v0')

def b_store_addrs(a):
    lv = a.newlabel('B_av'); le = a.newlabel('B_ae')
    a(f's_lshr_b32 s36, s{sMT}, 1')
    a(f's_and_b32 s37, s{sMT}, 1')
    a(f's_lshl_b32 s37, s37, 2')
    a(f's_add_u32 s37, s37, s{sRG}')
    a(f'v_lshrrev_b32 v10, 5, v0')
    a(f'v_and_b32 v11, 31, v0')
    a(f's_cmp_eq_u32 s{sTY}, 2')
    a(f's_cbranch_scc1 {lv}')
    a(f's_lshl_b32 s38, 10240, s{sTY}')
    a(f's_mul_i32 s39, s{sTY}, {WS_KV-WS_Q}')
    a(f's_add_u32 s39, s39, {WS_Q}')
    a(f's_mul_i32 s36, s36, s38')
    a(f's_add_u32 s39, s39, s36')
    a(f's_lshl_b32 s38, s38, 3')
    a(f'v_and_b32 v12, 0x13, v11')
    a(f'v_bfe_u32 v13, v11, 2, 1')
    a(f'v_lshl_or_b32 v12, v13, 3, v12')
    a(f'v_bfe_u32 v13, v11, 3, 1')
    a(f'v_lshl_or_b32 v12, v13, 2, v12')
    a(f's_cmp_eq_u32 s{sTY}, 0')
    a(f's_cselect_b64 vcc, -1, 0')
    a(f'v_cndmask_b32 v11, v12, v11, vcc')
    a(f'v_lshlrev_b32 v11, 4, v11')
    a(f's_lshl_b32 s40, s37, 10')
    a(f'v_add_u32 v12, s40, v11')
    a(f's_lshr_b32 s40, s37, 1')
    a(f's_lshl_b32 s40, s40, 9')
    a(f's_and_b32 s41, s37, 1')
    a(f's_lshl_b32 s41, s41, 3')
    a(f's_add_u32 s40, s40, s41')
    a(f's_add_u32 s40, s40, 8192')
    a(f'v_add_u32 v13, s40, v11')
    a(f's_mul_i32 s40, s{sTY}, 5')
    a(f's_sub_u32 s40, s{sNT}, s40')
    a(f's_lshl_b32 s40, s40, 5')
    a(f's_lshl_b32 s41, s{sKH}, 4')
    a(f's_add_u32 s40, s40, s41')
    a(f'v_add_u32 v10, s40, v10')
    for n in range(8):
        d = STA0 + n
        a(f'v_add_u32 v14, {2*n}, v10')
        a(f'v_mul_u32_u24 v15, 52429, v14')
        a(f'v_lshrrev_b32 v15, 18, v15')
        a(f'v_mul_u32_u24 v1, 5, v15')
        a(f'v_sub_u32 v14, v14, v1')
        a(f'v_and_b32 v1, 1, v14')
        a(f'v_lshl_add_u32 v{d}, v1, 3, v12')
        a(f'v_lshrrev_b32 v1, 1, v14')
        a(f'v_cmp_eq_u32 vcc, 4, v14')
        a(f'v_lshl_add_u32 v{d}, v1, 9, v{d}')
        a(f'v_mul_lo_u32 v15, v15, s38')
        a(f'v_cndmask_b32 v{d}, v{d}, v13, vcc')
        a(f'v_add_u32 v{d}, v{d}, v15')
    a(f's_branch {le}')
    a.label(lv)
    a(f's_mul_i32 s36, s36, 20480')
    a(f's_mul_i32 s40, s37, 1280')
    a(f's_add_u32 s39, s36, s40')
    a(f's_add_u32 s39, s39, {WS_KV + 10240}')
    a(f's_sub_u32 s40, s{sNT}, 10')
    a(f's_lshl_b32 s40, s40, 7')
    a(f's_lshl_b32 s41, s{sKH}, 6')
    a(f's_add_u32 s40, s40, s41')
    a(f's_mov_b32 s38, 163840')
    a(f'v_mul_u32_u24 v10, 320, v10')
    for n in range(2, 8): a(f'v_mov_b32 v{STA0+n}, 0x7f000000')
    for T in range(2):
        d = STA0 + T
        a(f'v_add_u32 v14, s40, v11')
        if T: a(f'v_add_u32 v14, 32, v14')
        a(f'v_mul_u32_u24 v15, 52429, v14')
        a(f'v_lshrrev_b32 v15, 20, v15')
        a(f'v_mul_u32_u24 v1, 20, v15')
        a(f'v_sub_u32 v14, v14, v1')
        a(f'v_lshl_add_u32 v{d}, v14, 4, v10')
        a(f'v_mul_lo_u32 v15, v15, s38')
        a(f'v_add_u32 v{d}, v{d}, v15')
    a.label(le)

def gs_issue(a, ldflag):
    a(f's_lshl_b32 s29, s{sRG}, 6')
    a(f'v_add_u32 v10, s29, v0')
    a(f'v_lshrrev_b32 v11, 2, v10')
    a(f'v_lshlrev_b32 v11, 5, v11')
    a(f'v_and_b32 v12, 1, v10')
    a(f'v_lshl_add_u32 v11, v12, 4, v11')
    a(f'v_bfe_u32 v12, v10, 1, 1')
    a(f'v_xor_b32 v13, 1, v12')
    a(f'v_mul_u32_u24 v13, 2560, v13')
    a(f'v_add_u32 v11, v11, v13')
    a(f'v_cmp_gt_u32 vcc, 160, v10')
    a(f'v_mov_b32 v13, 0x7f000000')
    a(f's_mul_i32 s29, s{sKH}, 1280')
    a(f'v_cndmask_b32 v11, v13, v11, vcc')
    a(f's_add_u32 s29, s29, {WS_MODP}')
    tok = None
    for p in range(4):
        tok = a.vmem(f'buffer_load_dwordx4 {v(GS0+4*p,4)}, v11, s[{SRD_WS}:{SRD_WS+3}], s29 offen {ldflag}')
        if p < 3: a(f's_add_u32 s29, s29, 15360')
    return tok

def gs_build(a):
    for i in range(4):
        a(f'v_add_f32 v{GS0+i}, v{GS0+i}, v{GS0+4+i}')
        a(f'v_add_f32 v{GS0+8+i}, v{GS0+8+i}, v{GS0+12+i}')
    for i in range(4): a(f'v_add_f32 v{GS0+i}, v{GS0+i}, v{GS0+8+i}')
    round_bf16_inplace(a, [GS0+i for i in range(4)], 13)
    a(f'v_xor_b32 v12, 1, v12')
    a(f'v_cvt_f32_u32 v12, v12')
    for i in range(4): a(f'v_add_f32 v{GS0+i}, v{GS0+i}, v12')
    round_bf16_inplace(a, [GS0+i for i in range(4)], 13)
    a(f's_cmp_eq_u32 s{sTY}, 0')
    a(f's_cselect_b32 s29, {hx(f2u(QSCALE))}, 1.0')
    for i in range(4): a(f'v_mul_f32 v{GS0+i}, s29, v{GS0+i}')
    a(f's_mul_i32 s29, s{sKH}, {GS_LDS[1]-GS_LDS[0]}')
    a(f's_add_u32 s29, s29, {GS_LDS[0]}')
    a(f'v_lshl_add_u32 v11, v10, 4, s29')
    a(f'v_cmp_gt_u32 vcc, 160, v10')
    a(f's_and_saveexec_b64 s[40:41], vcc')
    a(f'ds_write_b128 v11, {v(GS0,4)}')
    a(f's_mov_b64 exec, s[40:41]')

def tr_issue(a, phase, ks):
    i = (ks >> 1) + (10 if phase == 2 else 0)
    off = piece_addr(i) + (ks & 1)*2048
    hi = 0
    if (i & 3) == 3: hi = 2; off -= 61440
    b = BF0 + 8*(ks & 1)
    tok = None
    for T in range(2):
        for h in range(2):
            tok = a.ds(f'ds_read_b64_tr_b16 {v(b+4*T+2*h,2)}, v{A_T+hi+T} offset:{off+512*h}')
    return tok

def gs_read(a, ks):
    b = GS0 + 16*(ks & 1); tok = None
    for q in range(4): tok = a.ds(f'ds_read_b128 {v(b+4*q,4)}, v{A_GS} offset:{ks*128+16*q}')
    return tok

def prep_ops(ks):
    b = GS0 + 16*(ks & 1); x = XH0 + 4*ks
    mix = [f'v_fma_mix_f32 v{TMP0+j}, v{x+(j>>1)}, v{b+j}, v{b+8+j} op_sel:[{j&1},0,0] op_sel_hi:[1,0,0]' for j in range(8)]
    cvt = [f'v_cvt_pk_bf16_f32 v{x+m}, v{TMP0+2*m}, v{TMP0+2*m+1}' for m in range(4)]
    return mix, cvt

def mfma_b(isv, acc, ks, T, first):
    w = v(BF0 + 8*(ks & 1) + 4*T, 4); h = v(XH0 + 4*ks, 4)
    A, B = (h, w) if isv else (w, h)
    c = '0' if first else v(acc + 16*T, 16)
    return f'v_mfma_f32_32x32x16_bf16 {v(acc+16*T,16)}, {A}, {B}, {c}'

def b_kloop(a, isv, xtok, rtok, stflag, after_b4=None):
    a.wait(vm=rtok[0]); a('s_waitcnt lgkmcnt(0)'); a('s_barrier')
    n0 = PROF['n']; stamp(a, 'B0')
    g0 = gs_read(a, 0); t = {0: tr_issue(a, 1, 0)}; g = {1: gs_read(a, 1)}
    a.wait(vm=xtok[0], lg=g0)
    mix, cvt = prep_ops(0)
    for m in mix + cvt: a(m)
    for ks in range(20):
        a.wait(lg=t[ks])
        if ks == 0: a('s_nop 0')
        a(mfma_b(isv, ACC_S, ks, 0, ks == 0))
        if ks in (7, 15):
            a.wait(vm=rtok[(ks+1)//8]); a('s_barrier')
        if ks < 19:
            t[ks+1] = tr_issue(a, 1, ks+1)
            mix, cvt = prep_ops(ks+1)
            a.wait(vm=xtok[ks+1], lg=g[ks+1])
            for m in mix[:6]: a(m)
            a(mfma_b(isv, ACC_S, ks, 1, ks == 0))
            for m in mix[6:]: a(m)
            for m in cvt: a(m)
            if ks < 18: g[ks+2] = gs_read(a, ks+2)
            else: a('s_nop 0')
        else:
            a(mfma_b(isv, ACC_S, ks, 1, False))
    a('s_waitcnt vmcnt(0)'); a('s_barrier')
    stamp(a, 'B3')
    t = {0: tr_issue(a, 2, 0)}
    w_round(a, 4)
    a(f'v_add_u32 v1, s31, v{A_EX}')
    a(f's_xor_b32 s29, s{sW}, 4')
    a(f's_mul_i32 s29, s29, 20480')
    a(f'v_add_u32 v{A_EX}, s29, v{A_EX}')
    rx = None
    for ks in range(20):
        a.wait(lg=t[ks])
        a(mfma_b(isv, ACC_K, ks, 0, ks == 0))
        if ks == 11:
            a('s_waitcnt vmcnt(0) lgkmcnt(0)'); a('s_barrier')
        if ks < 19: t[ks+1] = tr_issue(a, 2, ks+1)
        a(mfma_b(isv, ACC_K, ks, 1, ks == 0))
        if ks == 11 and after_b4: after_b4()
        if 1 <= ks <= 8: a(f'ds_write_b128 v1, {v(ACC_S+4*(ks-1),4)} offset:{1024*(ks-1)}')
        if 11 <= ks <= 18: rx = a.ds(f'ds_read_b128 {v(ACC_S+4*(ks-11),4)}, v{A_EX} offset:{1024*(ks-11)}')
    a.wait(lg=rx)
    stamp(a, 'Bepi')
    a('s_nop 9')
    for T in range(2):
        if T == 1: a('s_nop 1')
        for r in range(16): a(f'v_add_f32 v{ACC_K+16*T+r}, v{ACC_K+16*T+r}, v{ACC_S+16*T+r}')
        for r in range(8): a(f'v_cvt_pk_bf16_f32 v{XH0+8*T+r}, v{ACC_K+16*T+2*r}, v{ACC_K+16*T+2*r+1}')
        if isv:
            for u in range(2): a(f'buffer_store_dwordx4 {v(XH0+8*T+4*u,4)}, v{STA0+T}, s[{SRD_WS}:{SRD_WS+3}], s39 offen offset:{640*u} {stflag}')
        else:
            for q in range(4): a(f'buffer_store_dwordx2 {v(XH0+8*T+2*q,2)}, v{STA0+4*T+q}, s[{SRD_WS}:{SRD_WS+3}], s39 offen {stflag}')

def phase_b_standalone(a, end):
    b_ids(a, end)
    gt = gs_issue(a, '')
    b_setup_addrs(a)
    a(f's_lshl_b32 s42, s{sMT}, 2')
    a(f's_add_u32 s42, s42, s{sRG}')
    a(f's_mul_i32 s42, s42, 40960')
    a(f's_mul_i32 s29, s{sKH}, 20480')
    a(f's_add_u32 s42, s42, s29')
    a(f's_add_u32 s42, s42, {WS_XH}')
    a(f'v_lshlrev_b32 v{A_XH}, 4, v0')
    xtok = {}; rtok = {}
    def xh(lo, hi):
        for ks in range(lo, hi):
            xtok[ks] = a.vmem(f'buffer_load_dwordx4 {v(XH0+4*ks,4)}, v{A_XH}, s[{SRD_WS}:{SRD_WS+3}], s42 offen offset:{(ks&3)*1024}')
            if ks & 3 == 3: a(f's_add_u32 s42, s42, 4096')
    xh(0, 4); rtok[0] = w_round(a, 0); xh(4, 12); rtok[1] = w_round(a, 1); xh(12, 20)
    rtok[2] = w_round(a, 2); rtok[3] = w_round(a, 3)
    a.wait(vm=gt)
    gs_build(a)
    b_setup_reads(a)
    b_store_addrs(a)
    lv = a.newlabel('B_v')
    a(f's_cmp_eq_u32 s{sTY}, 2')
    a(f's_cbranch_scc1 {lv}')
    st = (a.vm, a.lg, a.vm_done, a.lg_done); n0 = PROF['n']
    b_kloop(a, False, xtok, rtok, '')
    a(f's_branch {end}')
    a.label(lv)
    a.vm, a.lg, a.vm_done, a.lg_done = st
    PROF['n'] = n0
    b_kloop(a, True, xtok, rtok, '')


U0, TR0 = 16, 176
import phase_p

def x_group(a, c):
    tok = None
    for b in range(4):
        a(f's_add_u32 m0, s31, {c*4096 + b*1024}')
        a(f's_add_u32 s29, s42, {c*128 + b*8*1280}')
        tok = a.vmem(f'buffer_load_dwordx4 v{14 + (b&1)}, s[{SRD_C}:{SRD_C+3}], s29 offen lds')
    return tok

def gs_valid(a):
    for i in range(0, 16, 2): a(f'v_and_b32 v{212+(i>>1)%4}, v{GS0+i}, v{GS0+i+1}' if i < 8 else f'v_and_b32 v1, v{GS0+i}, v{GS0+i+1}\nv_and_b32 v{212+(i>>1)%4}, v{212+(i>>1)%4}, v1')
    a(f'v_and_b32 v212, v212, v213'); a(f'v_and_b32 v214, v214, v215')
    a(f'v_and_b32 v212, v212, v214')
    a(f'v_and_b32 v212, 1, v212')
    a(f'v_cmp_eq_u32 vcc, 0, v212')
    a(f's_and_b64 vcc, vcc, s[54:55]')

def b_front(a):
    srd(a, SRD_C, P_X, S_*D_*2)
    a(f's_mul_i32 s31, s{sW}, 20480')
    a(f's_lshl2_add_u32 s42, s{sMT}, s{sRG}')
    a(f's_mul_i32 s42, s42, {32*1280}')
    a(f's_mul_i32 s29, s{sKH}, 640')
    a(f's_add_u32 s42, s42, s29')
    a(f'v_lshrrev_b32 v1, 3, v0')
    a(f'v_mul_u32_u24 v14, 1280, v1')
    a(f'v_lshrrev_b32 v1, 4, v0')
    a(f'v_and_b32 v15, 7, v0')
    a(f'v_xor_b32 v1, v1, v15')
    a(f'v_lshl_add_u32 v14, v1, 4, v14')
    a(f'v_xor_b32 v15, 64, v14')
    l0 = a.newlabel('B_ld'); l1 = a.newlabel('B_ld')
    a(f's_lshl3_add_u32 s56, s{sWG}, s{sW}')
    a(f's_cmp_lg_u32 s56, 7')
    a(f's_cbranch_scc1 {l0}')
    a(f'v_lshlrev_b32 v1, 4, v0')
    for r in range(16, 20): a(f'v_mov_b32 v{r}, 0')
    a(f's_mov_b32 s29, {WS_MODP}')
    vm0 = a.vm
    for q in range(20):
        a(f'buffer_store_dwordx4 v[16:19], v1, s[{SRD_WS}:{SRD_WS+3}], s29 offen offset:{1024*(q&3)} sc1')
        if q & 3 == 3: a(f's_add_u32 s29, s29, 4096')
    a.vm = vm0
    a.label(l0)
    xt = {c: x_group(a, c) for c in range(3)}
    a(f's_cmp_lg_u32 s56, 7')
    a(f's_cbranch_scc1 {l1}')
    a(f'v_mov_b32 v1, 0'); a(f'v_mov_b32 v16, 1')
    vm0 = (a.vm, a.vm_done)
    a('s_waitcnt vmcnt(12)')
    a(f'global_store_dword v1, v16, s[{P_DBG}:{P_DBG+1}] sc1')
    a.vm, a.vm_done = vm0
    a.label(l1)
    b_setup_addrs(a)
    a(f'v_lshrrev_b32 v1, 3, v0')
    a(f'v_xor_b32 v14, 64, v15')
    phase_p.pf_setup(a)
    b_setup_reads(a)
    a(f'v_and_b32 v1, 31, v0')
    a(f'v_lshlrev_b32 v10, 7, v1')
    a(f'v_bfe_u32 v1, v0, 1, 3')
    a(f'v_lshrrev_b32 v11, 5, v0')
    a(f'v_xor_b32 v1, v1, v11')
    a(f'v_lshl_add_u32 v10, v1, 4, v10')
    a(f'v_add_u32 v10, s31, v10')
    for q in range(1, 4): a(f'v_xor_b32 v{10+q}, {32*q}, v10')
    for r in range(208, 212): a(f'v_mov_b32 v{r}, 0')
    rtok = {}
    got = None
    for c in range(5):
        a.wait(vm=xt[c])
        t = TR0 + 16*(c & 1)
        for q in range(4): rd = a.ds(f'ds_read_b128 {v(t+4*q,4)}, v{10+q} offset:{c*4096}')
        if c < 2: xt[c+3] = x_group(a, c+3)
        a.wait(lg=rd)
        if c in (1, 2): rtok[c-1] = w_round(a, c-1)
        if c == 2:
            a(f'v_mov_b32 v1, 0')
            got = a.vmem(f'global_load_dword v215, v1, s[{P_DBG}:{P_DBG+1}] sc1')
        for r in range(16):
            u = U0 + 32*c + 2*r
            a(f'v_lshlrev_b32 v{u}, 16, v{t+r}')
            a(f'v_and_b32 v{u+1}, 0xffff0000, v{t+r}')
            a(f'v_pk_add_f32 v[208:209], v[208:209], {v(u,2)}')
            a(f'v_pk_fma_f32 v[210:211], {v(u,2)}, {v(u,2)}, v[210:211]')
    stamp(a, 'Bx')
    a(f'v_add_f32 v208, v208, v209')
    a(f'v_add_f32 v210, v210, v211')
    a(f'v_lshlrev_b32 v1, 2, v0')
    a(f'v_add_u32 v10, s31, v1')
    a(f'v_permlane32_swap_b32 v208, v210')
    a(f'v_add_f32 v208, v208, v210')
    a(f'ds_write_b32 v10, v208 offset:{16384+3072}')
    a(f's_xor_b32 s29, s{sW}, 4')
    a(f's_mul_i32 s29, s29, 20480')
    a(f'v_add_u32 v10, s29, v1')
    a('s_waitcnt lgkmcnt(0)')
    a('s_barrier')
    a(f'ds_read_b32 v209, v10 offset:{16384+3072}')
    a('s_waitcnt lgkmcnt(0)')
    a(f'v_add_f32 v208, v208, v209')
    a(f'v_mov_b32 v210, v208')
    a('s_nop 1')
    a(f'v_permlane32_swap_b32 v208, v210')
    a(f'v_mul_f32 v208, {hx(f2u(-1/640))}, v208')
    a(f'v_mul_f32 v210, {hx(f2u(1/640))}, v210')
    a(f'v_fma_f32 v210, -v208, v208, v210')
    a(f'v_max_f32 v210, 0, v210')
    a(f'v_add_f32 v210, {hx(f2u(1e-5))}, v210')
    a(f'v_rsq_f32 v210, v210')
    a('s_nop 0')
    a(f'v_mul_f32 v208, v208, v210')
    def norm(lo, hi):
        for r in range(lo, hi):
            u = U0 + 2*r
            a(f'v_pk_fma_f32 {v(u,2)}, {v(u,2)}, v[210:211], v[208:209] op_sel_hi:[1,0,0]')
            a(f'v_cvt_pk_f16_f32 v{XH0+r}, v{u}, v{u+1}')
    norm(0, FRONT['sweep_at'])
    gs_addr(a)
    lg = a.newlabel('B_go'); lge = a.newlabel('B_goe')
    a.wait(vm=got)
    a(f's_mov_b32 s61, 0')
    a(f'v_mov_b32 v1, 0')
    a.label(lg)
    a(f'v_cmp_eq_u32 vcc, 0, v215')
    a(f's_add_u32 s61, s61, 1')
    a(f's_cbranch_vccz {lge}')
    a(f's_cmp_gt_u32 s61, {SPIN_MAX}')
    a(f's_cbranch_scc1 {lge}')
    vm0 = (a.vm, a.vm_done)
    a(f'global_load_dword v215, v1, s[{P_DBG}:{P_DBG+1}] sc1')
    a('s_waitcnt vmcnt(0)')
    a.vm, a.vm_done = vm0
    a(f's_branch {lg}')
    a.label(lge)
    ls = a.newlabel('B_sw'); lse = a.newlabel('B_swe'); lsk = a.newlabel('B_swk')
    gt = gs_loads(a)
    norm(FRONT['sweep_at'], 80)
    a.wait(vm=gt)
    a(f's_mov_b32 s61, 0')
    a.label(ls)
    gs_valid(a)
    a(f's_add_u32 s61, s61, 1')
    a(f's_cbranch_vccz {lse}')
    a(f's_cmp_gt_u32 s61, {SPIN_MAX}')
    a(f's_cbranch_scc1 {lse}')
    vm0 = (a.vm, a.vm_done)
    gs_loads(a)
    a('s_waitcnt vmcnt(0)')
    a.vm, a.vm_done = vm0
    a(f's_branch {ls}')
    a.label(lse)
    stamp(a, 'Bsw')
    rtok[2] = w_round(a, 2); rtok[3] = w_round(a, 3)
    gs_build(a)
    b_store_addrs(a)
    return rtok
FRONT = dict(sweep_at=40)

def gs_addr(a):
    a(f's_lshl_b32 s29, s{sRG}, 6')
    a(f'v_add_u32 v10, s29, v0')
    a(f'v_lshrrev_b32 v11, 2, v10')
    a(f'v_lshlrev_b32 v11, 5, v11')
    a(f'v_and_b32 v12, 1, v10')
    a(f'v_lshl_add_u32 v11, v12, 4, v11')
    a(f'v_bfe_u32 v12, v10, 1, 1')
    a(f'v_xor_b32 v13, 1, v12')
    a(f'v_mul_u32_u24 v13, 2560, v13')
    a(f'v_add_u32 v11, v11, v13')
    a(f'v_cmp_gt_u32 vcc, 160, v10')
    a(f'v_mov_b32 v13, 0x7f000000')
    a(f's_mul_i32 s57, s{sKH}, 1280')
    a(f'v_cndmask_b32 v11, v13, v11, vcc')
    a(f's_mov_b64 s[54:55], vcc')
    a(f's_add_u32 s57, s57, {WS_MODP}')

def gs_loads(a):
    tok = None
    for p in range(4):
        a(f's_add_u32 s29, s57, {5120*p}')
        tok = a.vmem(f'buffer_load_dwordx4 {v(GS0+4*p,4)}, v11, s[{SRD_WS}:{SRD_WS+3}], s29 offen sc1')
    return tok

def phase_b_fused(a):
    rtok = b_front(a)
    xtok = {ks: None for ks in range(20)}
    lv = a.newlabel('B_v'); le = a.newlabel('B_e')
    a(f's_cmp_eq_u32 s{sTY}, 2')
    a(f's_cbranch_scc1 {lv}')
    st = (a.vm, a.lg, a.vm_done, a.lg_done); n0 = PROF['n']
    hook = lambda: phase_p.pf_dma(a, 31)
    b_kloop(a, False, xtok, rtok, 'sc1', hook)
    a(f's_branch {le}')
    a.label(lv)
    a.vm, a.lg, a.vm_done, a.lg_done = st
    PROF['n'] = n0
    b_kloop(a, True, xtok, rtok, 'sc1', hook)
    a.label(le)
```

```python
from common import *
S0, O0, C0, Q1, Q2, K1, K2, V0, IDX = 16, 80, 112, 144, 152, 160, 168, 176, 192
AK, AV, AQ = 2, 3, 4
sHD, sQB, sQP, sKH, sMODE, sIT = 24, 25, 26, 27, 28, 29
sVM = 30
CFG = dict(pos=(0, 4, 8, 12), kpos=1, k2pos=5, vpos=9)

def qk(n_buf, j, t8, cop):
    s_ = S0 + 16*n_buf
    return [f'v_mfma_f32_32x32x16_bf16 {v(s_,16)}, {v(K1+4*(t8&1),4)}, {v(Q1+4*j,4)}, {cop}',
            f'v_mfma_f32_32x32x8bf16_1k {v(s_,16)}, {v(K2+4*((t8>>2)&1)+2*(t8&1),2)}, {v(Q2+4*j+2*((t8>>1)&1),2)}, {v(s_,16)}']
def pv(n_buf, j, t8):
    s_ = S0 + 16*n_buf
    return [f'v_smfmac_f32_32x32x32_bf16 {v(O0+16*j,16)}, {v(V0+8*(t8&1)+4*h,4)}, {v(s_+8*h,8)}, v{IDX}' for h in range(2)]
def rd_k1(t8): return f'ds_read_b128 {v(K1+4*(t8&1),4)}, v{AK} offset:{(t8>>3)*20480 + (t8&7)*1024}'
def rd_k2(g):  return f'ds_read_b128 {v(K2+4*(g&1),4)}, v{AK} offset:{(g>>1)*20480 + 8192 + (g&1)*1024}'
def rd_v(t8):
    o = (t8 >> 3)*20480 + 10240 + (t8 & 7)*1280
    return [f's_mov_b64 exec, s[{sVM}:{sVM+1}]'] + [f'ds_read_b128 {v(V0+8*(t8&1)+4*h,4)}, v{AV} offset:{o+640*h}' for h in range(2)] + ['s_mov_b64 exec, -1']

def c_ids(a):
    a(f's_and_b32 s{sHD}, s{sY}, 3')
    a(f's_lshl2_add_u32 s{sHD}, s{sX}, s{sHD}')
    a(f's_lshr_b32 s{sQB}, s{sY}, 2')
    a(f's_and_b32 s{sQP}, s{sW}, 3')
    a(f's_lshr_b32 s{sKH}, s{sW}, 2')
    a(f's_mov_b32 s{sMODE}, 0')
    a(f's_mov_b32 s{sVM}, 0xfffff')
    a(f's_mov_b32 s{sVM+1}, 0xfffff')

def c_loads(a, ldflag, after0=None):
    a(f'v_lshlrev_b32 v{AQ}, 4, v0')
    a(f'v_and_b32 v1, 31, v0')
    a(f'v_lshlrev_b32 v5, 4, v1')
    a(f's_mul_i32 s32, s{sHD}, 81920')
    a(f's_mul_i32 s33, s{sQB}, 10240')
    a(f's_add_u32 s32, s32, s33')
    a(f's_add_u32 s32, s32, {WS_Q}')
    a(f's_lshl_b32 s33, s{sQP}, 11')
    a(f's_add_u32 s33, s33, s32')
    a(f's_lshl_b32 s34, s{sQP}, 9')
    a(f's_add_u32 s34, s34, s32')
    a(f's_add_u32 s34, s34, 8192')
    for j in range(2): a(f'buffer_load_dwordx4 {v(Q1+4*j,4)}, v{AQ}, s[{SRD_WS}:{SRD_WS+3}], s33 offen offset:{1024*j} {ldflag}')
    a(f'buffer_load_dwordx4 v[8:11], v5, s[{SRD_WS}:{SRD_WS+3}], s34 offen {ldflag}')
    a(f's_mul_i32 s35, s{sKH}, 81920')
    a(f's_mul_i32 s36, s{sQP}, 5120')
    a(f's_add_u32 s35, s35, s36')
    a(f's_mul_i32 s36, s{sHD}, 163840')
    a(f's_add_u32 s36, s36, s35')
    a(f's_add_u32 s36, s36, {WS_KV}')
    tok = None
    for c in range(4):
        a(f's_add_u32 m0, s35, {c*20480}')
        if c: a(f's_add_u32 s36, s36, {20480-4096}')
        else: a('s_nop 0')
        for q in range(4): a(f'buffer_load_dwordx4 v{AQ}, s[{SRD_WS}:{SRD_WS+3}], s36 offen offset:{1024*q} {ldflag} lds')
        a(f's_add_u32 m0, s35, {c*20480+4096}')
        a(f's_add_u32 s36, s36, 4096')
        t = a.vmem(f'buffer_load_dwordx4 v{AQ}, s[{SRD_WS}:{SRD_WS+3}], s36 offen {ldflag} lds')
        if c == 0:
            tok = t
            if after0: after0()
    return tok

def c_init(a):
    a(f'v_mov_b32 v{IDX}, 0xdddddddd')
    a(f'v_and_b32 v1, 31, v0')
    a(f'v_lshrrev_b32 v6, 5, v0')
    a(f'v_mul_u32_u24 v7, 20, v6')
    a(f'v_add_u32 v7, v7, v1')
    a(f's_mul_i32 s33, s{sKH}, 81920')
    a(f'v_lshl_add_u32 v{AV}, v7, 4, s33')
    a(f'v_add_u32 v{AK}, s33, v{AQ}')
    a(f'v_cmp_eq_u32 vcc, 20, v1')
    a(f'v_mov_b32 v7, 0x3f803f80')
    for r in range(32): a(f'v_mov_b32 v{O0+r}, 0')
    for r in range(16): a(f'v_cndmask_b32 v{V0+r}, 0, v7, vcc')
    for r in range(16): a(f'v_mov_b32 v{S0+48+r}, 0')

def max16(a, dst, s_, first):
    if first:
        a(f'v_max3_f32 v{dst}, v{s_}, v{s_+1}, v{s_+2}')
        a(f'v_max3_f32 v{dst}, v{dst}, v{s_+3}, v{s_+15}')
        rng = range(4, 15, 2)
        for r in rng: a(f'v_max3_f32 v{dst}, v{dst}, v{s_+r}, v{s_+min(r+1,14)}')
    else:
        for r in range(0, 16, 2): a(f'v_max3_f32 v{dst}, v{dst}, v{s_+r}, v{s_+r+1}')

def c_body(a, cfg, hook=None):
    pos = cfg['pos']
    for n in range(16):
        t = n >> 1
        if n & 1: a('s_waitcnt lgkmcnt(0)')
        if n == 12:
            a('s_waitcnt vmcnt(0)')
            if hook: hook('pre')
            a('s_barrier')
            if hook: hook('post')
        ms = qk((n+1) & 3, (n+1) & 1, (n+1) >> 1, v(C0+16*((n+1) & 1), 16)) + pv((n-1) & 3, (n-1) & 1, ((n-1) >> 1) & 7)
        extra = {}
        if n & 1 == 0:
            extra.setdefault(cfg['kpos'], []).append(rd_k1(t+1))
            if n == 2: extra.setdefault(cfg['k2pos'], []).append(rd_k2(1))
            if n == 12: extra.setdefault(cfg['k2pos'], []).append(rd_k2(2))
        else:
            extra.setdefault(cfg['vpos'], []).extend(rd_v(t+1))
        mi = 0
        sb = S0 + 16*(n & 3)
        for i in range(16):
            while mi < 4 and pos[mi] == i: a(ms[mi]); mi += 1
            a(f'v_exp_f32 v{sb+i}, v{sb+i}')
            for e in extra.get(i, []): a(e)

def phase_c(a, ldflag, stflag, SCR=(0, 4096, 32768), cfg=CFG, hook=None, after0=None, tail=None, ids=True):
    restart = a.newlabel('C_restart'); exact = a.newlabel('C_exact'); havem = a.newlabel('C_havem'); done = a.newlabel('C_done')
    if ids: c_ids(a)
    a.label(restart)
    tok = c_loads(a, ldflag, after0)
    c_init(a)
    a.wait(vm=tok)
    a(f'v_cmp_gt_u32 vcc, 32, v0')
    a('s_barrier')
    stamp(a, 'C0')
    a(f'ds_read_b128 {v(K1,4)}, v{AQ}')
    a(f'ds_read_b128 {v(K2,4)}, v{AQ} offset:8192')
    for j in range(2):
        for r in range(2):
            a(f'v_cndmask_b32 v{Q2+4*j+r}, 0, v{8+2*j+r}, vcc')
            a(f'v_cndmask_b32 v{Q2+4*j+2+r}, v{8+2*j+r}, 0, vcc')
    a(f's_cmp_lg_u32 s{sMODE}, 0')
    a(f's_cbranch_scc1 {exact}')
    a('s_waitcnt lgkmcnt(0)')
    m0 = qk(0, 0, 0, '0'); m1 = qk(1, 1, 0, '0')
    a(m0[0]); a(m1[0]); a(m0[1]); a(m1[1])
    a(rd_k1(0)); a(rd_k2(0))
    for x in rd_v(0): a(x)
    a('s_nop 5')
    max16(a, 6, S0, True)
    max16(a, 7, S0+16, True)
    a(f's_mov_b32 s33, {hx(f2u(-32.0))}')
    a.label(havem)
    a(f'v_mov_b32 v12, v6'); a(f'v_mov_b32 v13, v7')
    a('s_nop 1')
    a(f'v_permlane32_swap_b32 v6, v12')
    a(f'v_permlane32_swap_b32 v7, v13')
    a(f'v_max_f32 v6, v6, v12')
    a(f'v_max_f32 v7, v7, v13')
    a(f'v_sub_f32 v{C0}, s33, v6')
    a(f'v_sub_f32 v{C0+16}, s33, v7')
    for r in range(1, 16): a(f'v_mov_b32 v{C0+r}, v{C0}')
    for r in range(1, 16): a(f'v_mov_b32 v{C0+16+r}, v{C0+16}')
    a('s_waitcnt lgkmcnt(0)')
    m0 = qk(0, 0, 0, v(C0, 16))
    a(m0[0]); a(m0[1])
    a(f's_mov_b32 s{sIT}, 4')
    a('s_nop 10')
    loop = a.newlabel('C_loop')
    stamp(a, 'Cloop')
    a('.p2align 3')
    a.label(loop)
    c_body(a, cfg, hook)
    a(f'v_add_u32 v{AK}, 20480, v{AK}')
    a(f'v_add_u32 v{AV}, 20480, v{AV}')
    a(f's_sub_u32 s{sIT}, s{sIT}, 1')
    a(f's_cmp_lg_u32 s{sIT}, 0')
    a(f's_cbranch_scc1 {loop}')
    stamp(a, 'Cend')
    for m in pv(3, 1, 7): a(m)
    a(f's_mul_i32 s33, s{sQP}, 3072')
    a(f's_add_u32 s33, s33, {SCR[0]}')
    a(f's_mul_i32 s34, s{sKH}, {SCR[1]}')
    a(f's_sub_u32 s35, {SCR[1]}, s34')
    a(f's_add_u32 s34, s34, s33')
    a(f's_add_u32 s35, s35, s33')
    a(f'v_add_u32 v6, s34, v{AQ}')
    a(f'v_add_u32 v7, s35, v{AQ}')
    a(f's_mov_b32 s34, {hx(f2u(2.0**120))}')
    a(f's_lshl_b32 s35, s{sW}, 2')
    a(f's_add_u32 s35, s35, {SCR[2]}')
    a(f'v_mov_b32 v12, s35')
    a(f'v_mov_b32 v14, {SCR[2]}')
    a('s_waitcnt lgkmcnt(0)')
    lk1 = a.newlabel('C_k1'); lk2 = a.newlabel('C_k2')
    a(f's_cmp_lg_u32 s{sKH}, 0')
    a(f's_cbranch_scc1 {lk1}')
    a('s_nop 2')
    for q in range(3): a(f'ds_write_b128 v6, {v(O0+16+4*q,4)} offset:{1024*q}')
    a(f's_branch {lk2}')
    a.label(lk1)
    for q in range(3): a(f'ds_write_b128 v6, {v(O0+4*q,4)} offset:{1024*q}')
    a('s_nop 1')
    for r in range(12): a(f'v_swap_b32 v{O0+r}, v{O0+16+r}')
    a.label(lk2)
    for j in range(2):
        for r in range(12): a(f'v_cmpx_gt_f32_e64 vcc, s34, |v{O0+16*j+r}|')
    a('s_nop 1')
    a(f's_cmp_eq_u64 exec, -1')
    a(f's_mov_b64 exec, -1')
    a(f's_cselect_b32 s35, 0, 1')
    a(f'v_mov_b32 v13, s35')
    a(f'ds_write_b32 v12, v13')
    a('s_waitcnt lgkmcnt(0)')
    a('s_barrier')
    for q in range(3): a(f'ds_read_b128 {v(S0+4*q,4)}, v7 offset:{1024*q}')
    a(f'ds_read_b128 {v(S0+16,4)}, v14')
    a(f'ds_read_b128 {v(S0+20,4)}, v14 offset:16')
    a(f's_lshl_b32 s33, s{sQB}, 4')
    a(f's_lshl2_add_u32 s33, s{sQP}, s33')
    a(f's_lshl1_add_u32 s33, s{sKH}, s33')
    a(f's_mul_i32 s33, s33, 20480')
    a(f's_add_u32 s33, s33, {WS_OF}')
    a(f's_lshr_b32 s35, s{sHD}, 1')
    a(f's_and_b32 s36, s{sHD}, 1')
    a(f's_lshl_b32 s37, s35, 10')
    a(f's_lshl_b32 s38, s36, 9')
    a(f's_add_u32 s37, s37, s38')
    a(f's_add_u32 s37, s37, s33')
    a(f's_lshl_b32 s38, s35, 8')
    a(f's_lshl3_add_u32 s38, s36, s38')
    a(f's_add_u32 s38, s38, 16384')
    a(f's_add_u32 s38, s38, s33')
    a(f'v_and_b32 v1, 15, v0')
    a(f'v_lshlrev_b32 v1, 4, v1')
    a(f'v_bfe_u32 v6, v0, 4, 1')
    a(f'v_mul_u32_u24 v6, 20480, v6')
    a(f'v_add_u32 v1, v1, v6')
    a(f'v_lshrrev_b32 v6, 5, v0')
    a(f'v_lshl_add_u32 v6, v6, 8, v1')
    a('s_waitcnt lgkmcnt(0)')
    a(f'v_or3_b32 v12, v{S0+16}, v{S0+17}, v{S0+18}')
    a(f'v_or3_b32 v12, v12, v{S0+19}, v{S0+20}')
    a(f'v_or3_b32 v12, v12, v{S0+21}, v{S0+22}')
    a(f'v_or_b32 v12, v12, v{S0+23}')
    for r in range(12): a(f'v_add_f32 v{O0+r}, v{O0+r}, v{S0+r}')
    a(f'v_readfirstlane_b32 s35, v12')
    a(f'v_mov_b32 v12, v{O0+8}')
    a(f'v_mov_b32 v13, v{O0+8}')
    a(f's_andn2_b32 s35, s35, s{sMODE}')
    a(f's_cmp_eq_u32 s35, 0')
    lgo = a.newlabel('C_go')
    a(f's_cbranch_scc1 {lgo}')
    a(f's_mov_b32 s{sMODE}, 1')
    a('s_barrier')
    a(f's_branch {restart}')
    a.label(lgo)
    stamp(a, 'Cgo')
    a(f'v_permlane32_swap_b32 v12, v13')
    a(f'v_rcp_f32 v13, v13')
    a('s_nop 0')
    for r in range(12): a(f'v_mul_f32 v{O0+r}, v{O0+r}, v13')
    for r in range(6): a(f'v_cvt_pk_bf16_f32 v{S0+r}, v{O0+2*r}, v{O0+2*r+1}')
    a(f'buffer_store_dwordx4 {v(S0,4)}, v6, s[{SRD_WS}:{SRD_WS+3}], s37 offen {stflag}')
    a(f's_mov_b32 exec_hi, 0')
    a(f'buffer_store_dwordx2 {v(S0+4,2)}, v1, s[{SRD_WS}:{SRD_WS+3}], s38 offen {stflag}')
    a(f's_mov_b64 exec, -1')
    st = (a.vm, a.lg, a.vm_done, a.lg_done)
    a(f's_branch {done}')
    if hook: hook('out')
    a.label(exact)
    a('s_waitcnt vmcnt(0) lgkmcnt(0)')
    a('s_barrier')
    a(f'v_mov_b32 v6, 0xff800000'); a(f'v_mov_b32 v7, 0xff800000')
    a(f'v_mov_b32 v{AK}, v{AQ}')
    a(f's_mov_b32 s{sIT}, 8')
    xl = a.newlabel('C_xl')
    a.label(xl)
    for t8 in range(8):
        a(rd_k1(t8))
        if t8 & 3 == 0: a(rd_k2(t8 >> 2))
        a('s_waitcnt lgkmcnt(0)')
        m0 = qk(0, 0, t8, '0'); m1 = qk(1, 1, t8, '0')
        a(m0[0]); a(m1[0]); a(m0[1]); a(m1[1])
        a('s_nop 11')
        max16(a, 6, S0, False)
        max16(a, 7, S0+16, False)
    a(f'v_add_u32 v{AK}, 20480, v{AK}')
    a(f's_sub_u32 s{sIT}, s{sIT}, 1')
    a(f's_cmp_lg_u32 s{sIT}, 0')
    a(f's_cbranch_scc1 {xl}')
    a(f's_mul_i32 s33, s{sKH}, 81920')
    a(f'v_add_u32 v{AK}, s33, v{AQ}')
    a(rd_k1(0)); a(rd_k2(0))
    for x in rd_v(0): a(x)
    a(f's_mov_b32 s33, 0')
    a(f's_branch {havem}')
    a.label(done)
    a.vm, a.lg, a.vm_done, a.lg_done = st
    if tail: tail()

def standalone_pc(a, end):
    phase_c(a, '', '', SCR=(0, 12288, 32768))
```

```python
from common import *
AF0, ACC0, BF0, RES0, GV0 = 32, 140, 160, 248, 200
A_B, A_L, A_NP, A_N4, A_FP, A_F4, A_G = 2, 4, 5, 6, 7, 8, 9
sRT, sCT, sRU, sKH = 24, 25, 26, 27
sWSRC, sWLDS, sNAT, sFRG, sASRC = 32, 33, 34, 35, 36

def df_ids(a, isF):
    NJ = 27 if isF else 10
    a(f's_and_b32 s{sRT}, s{sY}, 3')
    a(f's_lshr_b32 s{sCT}, s{sY}, 2')
    a(f's_and_b32 s{sRU}, s{sW}, 3')
    a(f's_lshr_b32 s{sKH}, s{sW}, 2')
    a(f's_lshl1_add_u32 s28, s{sCT}, s{sKH}')
    a(f's_mul_i32 s{sWSRC}, s28, {NJ*5120}')
    a(f's_lshl_b32 s28, s{sRU}, 10')
    a(f's_add_u32 s{sWSRC}, s{sWSRC}, s28')
    a(f's_add_u32 s{sWSRC}, s{sWSRC}, {WS_WDP if isF else WS_WOP}')
    a(f's_mul_i32 s{sWLDS}, s{sKH}, 81920')
    a(f's_add_u32 s{sWLDS}, s{sWLDS}, s28')
    a(f'v_lshlrev_b32 v{A_L}, 4, v0')

def w_rounds(a, lo, hi, ldflag, src=sWSRC, lds=sWLDS):
    tok = None
    for r in range(lo, hi):
        a(f's_add_u32 m0, s{lds}, {(r % 20)*4096}')
        a(f's_add_u32 s62, s{src}, {r*4096}')
        tok = a.vmem(f'buffer_load_dwordx4 v{A_L}, s[{SRD_WS}:{SRD_WS+3}], s62 offen {ldflag} lds')
    return tok

def df_addrs(a, isF, ldflag, fused=False):
    NJ = 27 if isF else 10
    a(f's_lshl_b32 s28, s{sX}, 2')
    a(f's_add_u32 s28, s28, s{sRT}')
    a(f's_lshl2_add_u32 s28, s28, s{sRU}')
    a(f's_mul_i32 s{sASRC}, s28, {2*NJ*1024}')
    a(f's_mul_i32 s29, s{sKH}, {NJ*1024}')
    a(f's_add_u32 s{sASRC}, s{sASRC}, s29')
    a(f's_add_u32 s{sASRC}, s{sASRC}, {WS_HF if isF else WS_OF}')
    a(f's_mul_i32 s{sNAT}, s28, {16*1280}')
    a(f's_mul_i32 s29, s{sCT}, 160')
    a(f's_add_u32 s{sNAT}, s{sNAT}, s29')
    a(f's_lshr_b32 s30, s28, 1')
    a(f's_mul_i32 s{sFRG}, s30, 40960')
    a(f's_mul_i32 s30, s{sCT}, 5120')
    a(f's_add_u32 s{sFRG}, s{sFRG}, s30')
    a(f's_and_b32 s30, s28, 1')
    a(f's_lshl_b32 s30, s30, 8')
    a(f's_add_u32 s{sFRG}, s{sFRG}, s30')
    a(f's_add_u32 s{sFRG}, s{sFRG}, {WS_X1F}')
    a(f'v_and_b32 v1, 15, v0')
    a(f'v_lshrrev_b32 v10, 4, v0')
    a(f'v_mul_u32_u24 v11, 1280, v1')
    a(f's_lshl_b32 s30, s{sKH}, 6')
    a(f'v_lshl_add_u32 v{A_NP}, v10, 4, v11')
    a(f'v_add_u32 v{A_NP}, s30, v{A_NP}')
    a(f'v_lshl_add_u32 v{A_N4}, v10, 3, v11')
    a(f'v_add_u32 v{A_N4}, 128, v{A_N4}')
    a(f'v_lshlrev_b32 v11, 4, v1')
    a(f's_lshl_b32 s30, s{sKH}, 11')
    a(f'v_lshl_add_u32 v{A_FP}, v10, 9, v11')
    a(f'v_add_u32 v{A_FP}, s30, v{A_FP}')
    a(f'v_lshrrev_b32 v12, 1, v10')
    a(f'v_lshl_add_u32 v{A_F4}, v12, 9, v11')
    a(f'v_and_b32 v12, 1, v10')
    a(f'v_lshl_add_u32 v{A_F4}, v12, 3, v{A_F4}')
    a(f'v_add_u32 v{A_F4}, 4096, v{A_F4}')
    a(f's_mul_i32 s30, s{sKH}, 81920')
    a(f'v_add_u32 v{A_B}, s30, v{A_L}')
    a(f'v_add_u32 v{A_B+1}, 40960, v{A_B}')
    a(f's_lshl_b32 s30, s{sKH}, 7')
    a(f'v_lshl_add_u32 v{A_G}, v10, 5, s30')
    a(f'v_lshlrev_b32 v10, 4, v10')
    a(f's_lshl_b32 s29, s29, 1')
    a(f's_add_u32 s29, s29, {WS_MODF + (3 if isF else 0)*2560 if fused else WS_MODP + (5 if isF else 2)*2560}')
    for p in range(1 if fused else 4):
        a(f'buffer_load_dwordx4 {v(GV0+12*p,4)}, v{A_G}, s[{SRD_WS}:{SRD_WS+3}], s29 offen {ldflag}')
        a(f'buffer_load_dwordx4 {v(GV0+12*p+4,4)}, v{A_G}, s[{SRD_WS}:{SRD_WS+3}], s29 offen offset:16 {ldflag}')
        tok = a.vmem(f'buffer_load_dwordx4 {v(GV0+12*p+8,4)}, v10, s[{SRD_WS}:{SRD_WS+3}], s29 offen offset:256 {ldflag}')
        if p < 3 and not fused: a(f's_add_u32 s29, s29, 15360')
    srd(a, SRD_C, P_OUT if isF else P_X, S_*D_*2)
    if isF and fused: pass
    elif isF:
        a(f'buffer_load_dwordx4 {v(RES0,4)}, v{A_FP}, s[{SRD_WS}:{SRD_WS+3}], s{sFRG} offen {ldflag}')
        tok = a.vmem(f'buffer_load_dwordx2 {v(RES0+4,2)}, v{A_F4}, s[{SRD_WS}:{SRD_WS+3}], s{sFRG} offen {ldflag}')
    else:
        a(f'buffer_load_dwordx4 {v(RES0,4)}, v{A_NP}, s[{SRD_C}:{SRD_C+3}], s{sNAT} offen')
        tok = a.vmem(f'buffer_load_dwordx2 {v(RES0+4,2)}, v{A_N4}, s[{SRD_C}:{SRD_C+3}], s{sNAT} offen')
    return tok

def gv_sum(a):
    for i in range(12):
        a(f'v_add_f32 v{GV0+i}, v{GV0+i}, v{GV0+12+i}')
        a(f'v_add_f32 v{GV0+24+i}, v{GV0+24+i}, v{GV0+36+i}')
    for i in range(12): a(f'v_add_f32 v{GV0+i}, v{GV0+i}, v{GV0+24+i}')
    round_bf16_inplace(a, [GV0+i for i in range(12)], 1)

def a_loads(a, lo, hi, ldflag, toks):
    for j in range(lo, hi):
        if j & 3 == 0 and j: a(f's_add_u32 s{sASRC}, s{sASRC}, 4096')
        toks[j] = a.vmem(f'buffer_load_dwordx4 {v(AF0+4*j,4)}, v{A_L}, s[{SRD_WS}:{SRD_WS+3}], s{sASRC} offen offset:{(j&3)*1024} {ldflag}')

def b_read(a, j):
    tok = None
    for cu in range(5):
        p = (5*j + cu) % 80
        hi = p >= 40
        tok = a.ds(f'ds_read_b128 {v(BF0+20*(j&1)+4*cu,4)}, v{A_B+hi} offset:{(p-40*hi)*1024}')
    return tok

def df_loop(a, isF, atok, wtok, ldflag, stflag, barriers, head=True, feed=None, scr=None):
    NJ = 27 if isF else 10
    if head: a.wait(vm=wtok[0]); a('s_barrier')
    stamp(a, 'F0' if isF else 'D0')
    t = {0: b_read(a, 0)}
    for j in range(NJ):
        a.wait(vm=atok[j], lg=t[j])
        for cu in range(5):
            c = '0' if j == 0 else v(ACC0+4*cu, 4)
            a(f'v_mfma_f32_16x16x32_bf16 {v(ACC0+4*cu,4)}, {v(BF0+20*(j&1)+4*cu,4)}, {v(AF0+4*j,4)}, {c}')
            if cu == 0 and j+1 < NJ:
                if (j+1) % 4 == 0 and (j+1)//4 in barriers:
                    b = (j+1)//4
                    a.wait(vm=wtok.get(b)); a('s_barrier')
                    if isF and b <= 3: wtok[b+3] = w_rounds(a, 15+5*b, min(20+5*b, 34), ldflag)
                t[j+1] = b_read(a, j+1)
            if cu == 1 and feed: feed(j)
    stamp(a, 'Fend' if isF else 'Dend')
    base, khs = scr if scr else (61440, 81920)
    a(f's_mul_i32 s28, s{sRU}, 3072')
    a(f's_add_u32 s28, s28, {base}')
    a(f's_mul_i32 s29, s{sKH}, {khs}')
    a(f's_sub_u32 s30, {khs}, s29')
    a(f's_add_u32 s29, s29, s28')
    a(f's_add_u32 s30, s30, s28')
    a(f'v_add_u32 v10, s29, v{A_L}')
    a(f'v_add_u32 v11, s30, v{A_L}')
    for q in range(3): a(f'ds_write_b128 v10, {v(ACC0+8+4*q,4)} offset:{1024*q}')
    a('s_waitcnt lgkmcnt(0)')
    a('s_barrier')
    for q in range(3): a(f'ds_read_b128 {v(BF0+4*q,4)}, v11 offset:{1024*q}')
    for r in range(6):
        a(f'v_lshlrev_b32 v{AF0+2*r}, 16, v{RES0+r}')
        a(f'v_and_b32 v{AF0+2*r+1}, 0xffff0000, v{RES0+r}')
    a('s_waitcnt lgkmcnt(0)')
    for r in range(12):
        acc = ACC0 + (r if r < 8 else r+8)
        a(f'v_add_f32 v{acc}, v{acc}, v{BF0+r}')
    for r in range(12):
        acc = ACC0 + (r if r < 8 else r+8)
        a(f'v_fmac_f32 v{AF0+r}, v{acc}, v{GV0+r}')
    for r in range(6): a(f'v_cvt_pk_bf16_f32 v{RES0+r}, v{AF0+2*r}, v{AF0+2*r+1}')
    l = a.newlabel('DF_n4')
    if isF: sr, so, ap, a4, fl = SRD_C, sNAT, A_NP, A_N4, ''
    else: sr, so, ap, a4, fl = SRD_WS, sFRG, A_FP, A_F4, stflag
    a(f'buffer_store_dwordx4 {v(RES0,4)}, v{ap}, s[{sr}:{sr+3}], s{so} offen {fl}')
    a(f's_cmp_lg_u32 s{sKH}, 0')
    a(f's_cbranch_scc1 {l}')
    a(f'buffer_store_dwordx2 {v(RES0+4,2)}, v{a4}, s[{sr}:{sr+3}], s{so} offen {fl}')
    a.vm -= 1
    a.label(l)
    if not isF:
        a(f's_cselect_b32 s28, 0, -1')
        a(f's_mov_b32 s29, 0x3f803f80')
        a(f'v_and_b32 v12, s28, v{RES0+4}')
        a(f'v_and_b32 v13, s28, v{RES0+5}')
        src = [RES0, RES0+1, RES0+2, RES0+3, 12, 13]
        for i, r in enumerate(src):
            a(f'v_dot2_f32_bf16 v10, v{r}, s29, {"0" if i == 0 else "v10"}')
            a(f'v_dot2_f32_bf16 v11, v{r}, v{r}, {"0" if i == 0 else "v11"}')
        a(f'v_and_b32 v1, 15, v0')
        a(f'v_lshlrev_b32 v1, 7, v1')
        a(f'v_bfe_u32 v12, v0, 4, 1')
        a(f'v_permlane16_swap_b32 v10, v11')
        a(f'v_add_f32 v10, v10, v11')
        a(f'v_mov_b32 v11, v10')
        a(f'v_lshl_add_u32 v1, v12, 2, v1')
        a(f's_lshl_b32 s28, s{sX}, 2')
        a(f'v_permlane32_swap_b32 v10, v11')
        a(f'v_add_f32 v10, v10, v11')
        a(f's_add_u32 s28, s28, s{sRT}')
        a(f's_lshl2_add_u32 s28, s28, s{sRU}')
        a(f's_lshl_b32 s28, s28, 11')
        a(f's_lshl1_add_u32 s29, s{sCT}, s{sKH}')
        a(f's_lshl3_add_u32 s28, s29, s28')
        a(f's_add_u32 s28, s28, {WS_ST}')
        a(f's_mov_b32 exec_hi, 0')
        a(f'buffer_store_dword v10, v1, s[{SRD_WS}:{SRD_WS+3}], s28 offen {stflag}')
        a(f's_mov_b64 exec, -1')

def standalone(a, isF):
    df_ids(a, isF)
    NJ = 27 if isF else 10
    wtok = {}; atok = {}
    gt = df_addrs(a, isF, '')
    wtok[0] = w_rounds(a, 0, 5, ''); a_loads(a, 0, 4, '', atok)
    wtok[1] = w_rounds(a, 5, 10, ''); a_loads(a, 4, 8, '', atok)
    wtok[2] = w_rounds(a, 10, 15 if isF else 13, ''); a_loads(a, 8, min(12, NJ), '', atok)
    if isF:
        wtok[3] = w_rounds(a, 15, 20, ''); a_loads(a, 12, NJ, '', atok)
    a.wait(vm=gt)
    gv_sum(a)
    df_loop(a, isF, atok, wtok, '', '', set(range(1, 7)))

def standalone_pd(a, end): standalone(a, False)
def standalone_pf(a, end): standalone(a, True)
```

```python
from common import *
ACC0, AF0, BF0, EXW, EXT, UV0, ST0 = 64, 128, 136, 168, 184, 192, 224
A_L, A_B, A_A, A_O, vNRS, vSD = 2, 3, 5, 6, 7, 8
sRB, sST, sRG, sCG = 24, 25, 26, 27
sWSRC, sTILE, sASRC, sWL, sOUT = 32, 33, 34, 35, 36
A_RING = 114688

sFS = 39
def e_ids(a):
    a(f's_lshr_b32 s28, s{sX}, 1')
    a(f's_and_b32 s29, s{sY}, 3')
    a(f's_lshl2_add_u32 s{sRB}, s28, s29')
    a(f's_and_b32 s28, s{sX}, 1')
    a(f's_lshr_b32 s29, s{sY}, 2')
    a(f's_lshl3_add_u32 s{sFS}, s28, s29')
    a(f's_mov_b32 s28, s{sFS}')
    a(f's_mul_i32 s28, s28, {101*4370}')
    a(f's_lshr_b32 s{sST}, s28, 16')
    a(f's_and_b32 s{sRG}, s{sW}, 3')
    a(f's_lshr_b32 s{sCG}, s{sW}, 2')
    a(f's_cmp_eq_u32 s{sW}, 7')
    a(f's_cselect_b32 s{sTILE}, 0, s{sW}')
    a(f's_cselect_b32 s28, 1024, 0')
    a(f's_add_u32 s29, s{sST}, s{sTILE}')
    a(f's_mul_i32 s{sWSRC}, s29, 40960')
    a(f's_add_u32 s{sWSRC}, s{sWSRC}, s28')
    a(f's_add_u32 s{sWSRC}, s{sWSRC}, {WS_WGP}')
    a(f's_lshl_b32 s{sWL}, s{sW}, 10')
    a(f'v_lshlrev_b32 v{A_L}, 4, v0')
assert all((fs*101*4370) >> 16 == fs*101//15 for fs in range(16))

def w_rounds(a, lo, hi, ldflag):
    tok = None
    for r in range(lo, hi):
        a(f's_add_u32 m0, s{sWL}, {(r % 14)*8192}')
        a(f's_add_u32 s{sTILE}, s{sTILE}, 1')
        tok = a.vmem(f'buffer_load_dwordx4 v{A_L}, s[{SRD_WS}:{SRD_WS+3}], s{sWSRC} offen {ldflag} lds')
        a(f's_cmp_eq_u32 s{sTILE}, 7')
        a(f's_cselect_b32 s28, {hx(1024 - 7*40960)}, 0')
        a(f's_cselect_b32 s{sTILE}, 0, s{sTILE}')
        a(f's_add_u32 s{sWSRC}, s{sWSRC}, s28')
        a(f's_add_u32 s{sWSRC}, s{sWSRC}, {40960+1024}')
    return tok

def a_rounds(a, lo, hi, ldflag):
    tok = None
    for r in range(lo, hi):
        a(f's_add_u32 m0, s{sWL}, {A_RING + (r % 6)*8192}')
        a(f's_add_u32 s28, s{sASRC}, {r*2048}')
        tok = a.vmem(f'buffer_load_dwordx4 v{A_L}, s[{SRD_WS}:{SRD_WS+3}], s28 offen {ldflag} lds')
    return tok

def e_addrs(a):
    a(f's_lshl2_add_u32 s28, s{sRB}, s{sRG}')
    a(f's_mul_i32 s{sASRC}, s28, 40960')
    a(f's_lshl_b32 s29, s{sCG}, 10')
    a(f's_add_u32 s{sASRC}, s{sASRC}, s29')
    a(f's_add_u32 s{sASRC}, s{sASRC}, {WS_X1F}')
    a(f's_lshl_b32 s37, s28, 12')
    a(f's_add_u32 s37, s37, {WS_ST}')
    a(f's_mul_i32 s{sOUT}, s28, {2*55296}')
    a(f's_lshl2_add_u32 s29, s{sCG}, s{sST}')
    a(f's_lshl_b32 s30, s29, 9')
    a(f's_add_u32 s{sOUT}, s{sOUT}, s30')
    a(f's_add_u32 s{sOUT}, s{sOUT}, {WS_HF}')
    a(f's_lshl_b32 s38, s29, 11')
    a(f's_add_u32 s38, s38, {WS_UV}')
    a(f's_lshl_b32 s29, s{sCG}, 12')
    a(f'v_add_u32 v{A_B}, s29, v{A_L}')
    a(f'v_add_u32 v{A_B+1}, 57344, v{A_B}')
    a(f's_lshl_b32 s29, s{sRG}, 10')
    a(f's_add_u32 s29, s29, {A_RING}')
    a(f'v_add_u32 v{A_A}, s29, v{A_L}')
    a(f'v_and_b32 v1, 15, v0')
    a(f'v_lshlrev_b32 v1, 4, v1')
    a(f'v_lshrrev_b32 v10, 5, v0')
    a(f'v_lshl_add_u32 v1, v10, 8, v1')
    a(f'v_bfe_u32 v11, v0, 4, 1')
    a(f'v_mul_u32_u24 v11, 55296, v11')
    a(f'v_add_u32 v{A_O}, v1, v11')
    a(f'v_and_b32 v1, 31, v0')
    a(f'v_lshl_add_u32 v1, v1, 1, v10')
    a(f'v_lshlrev_b32 v11, 5, v1')
    a(f'v_lshlrev_b32 v12, 6, v1')

def uv_issue(a, ldflag):
    tok = None
    for tl in range(4):
        if tl == 2: a(f's_add_u32 s38, s38, 4096')
        for q in range(2):
            tok = a.vmem(f'buffer_load_dwordx4 {v(UV0+8*tl+4*q,4)}, v11, s[{SRD_WS}:{SRD_WS+3}], s38 offen offset:{2048*(tl&1)+16*q} {ldflag}')
    return tok

def uv_ops():
    L = []
    for tl in range(4):
        b = UV0 + 8*tl; e = EXW + 4*tl
        for i in range(4): L.append(f'v_add_f32 v{b+i}, v{b+i}, v{b+4+i}')
        L += [f'v_add_f32 v{b}, v{b}, v{b+1}', f'v_add_f32 v{b+2}, v{b+2}, v{b+3}', f'v_add_f32 v{b}, v{b}, v{b+2}',
              f'v_cvt_pk_bf16_f32 v{e}, v{b}, v{b}', f'v_and_b32 v{b+1}, 0xffff0000, v{e}', f'v_sub_f32 v{b}, v{b}, v{b+1}',
              f'v_cvt_pk_bf16_f32 v{e+1}, v{b}, v{b}', f'v_mov_b32 v{e+2}, 0', f'v_mov_b32 v{e+3}, 0']
    return L

def st_issue(a, ldflag):
    tok = None
    for q in range(4): tok = a.vmem(f'buffer_load_dwordx4 {v(ST0+4*q,4)}, v12, s[{SRD_WS}:{SRD_WS+3}], s37 offen offset:{16*q} {ldflag}')
    return tok

def st_ops():
    b = ST0; L = []
    for i in range(8): L.append(f'v_add_f32 v{b+i}, v{b+i}, v{b+8+i}')
    for i in range(4): L.append(f'v_add_f32 v{b+i}, v{b+i}, v{b+4+i}')
    for i in range(2): L.append(f'v_add_f32 v{b+i}, v{b+i}, v{b+2+i}')
    L += ['s_nop 1', f'v_permlane32_swap_b32 v{b}, v{b+1}', f'v_add_f32 v{b}, v{b}, v{b+1}', f'v_mov_b32 v{b+1}, v{b}', 's_nop 1',
          f'v_permlane32_swap_b32 v{b}, v{b+1}',
          f'v_mul_f32 v{b}, {hx(f2u(-1/640))}, v{b}',
          f'v_mul_f32 v{b+1}, {hx(f2u(1/640))}, v{b+1}',
          f'v_fma_f32 v{b+1}, -v{b}, v{b}, v{b+1}',
          f'v_max_f32 v{b+1}, 0, v{b+1}',
          f'v_add_f32 v{b+1}, {hx(f2u(1e-5))}, v{b+1}',
          f'v_rsq_f32 v{vNRS}, v{b+1}',
          f'v_cmp_gt_u32 vcc, 32, v0',
          f'v_mul_f32 v{vSD}, v{b+1}, v{vNRS}',
          f'v_mul_f32 v{vNRS}, {hx(f2u(-math.log2(math.e)))}, v{vNRS}',
          f'v_cndmask_b32 v{b}, v{vSD}, v{b}, vcc',
          f'v_cvt_pk_bf16_f32 v{b+1}, v{b}, v{b}',
          f'v_and_b32 v{b+1}, 0xffff0000, v{b+1}',
          f'v_sub_f32 v{b+1}, v{b}, v{b+1}',
          f'v_cvt_pk_bf16_f32 v{EXT}, v{b}, v{b+1}',
          f'v_mov_b32 v{EXT+1}, v{EXT}', f'v_mov_b32 v{EXT+2}, 0', f'v_mov_b32 v{EXT+3}, 0']
    return L

def frag_read(a, ks, NT):
    tok = a.ds(f'ds_read_b128 {v(AF0+4*(ks&1),4)}, v{A_A} offset:{((ks>>1)%6)*8192 + (ks&1)*4096}')
    k16 = ks % 16; hi = k16 >= 8
    for tl in range(NT):
        tok = a.ds(f'ds_read_b128 {v(BF0+16*(ks&1)+4*tl,4)}, v{A_B+hi} offset:{(7*(k16-8*hi)+tl)*1024}')
    return tok

WNEED = [-(-28*(b+1)//8) for b in range(10)]
WISS = [min((28*b+112)//8, 35) for b in range(10)]

def e_loop(a, NT, wtok, atok, side, ldflag, stflag, extra=None, endhook=None):
    wtok = dict(wtok); atok = dict(atok)
    a.wait(vm=max(wtok[WNEED[0]-1], atok[1])); a('s_barrier')
    stamp(a, 'E0')
    t = {0: frag_read(a, 0, NT)}
    side = [(k, tk, list(ops)) for k, tk, ops in side]
    for ks in range(40):
        a.wait(lg=t[ks])
        for tl in range(NT):
            c = '0' if ks == 0 else v(ACC0+16*tl, 16)
            a(f'v_mfma_f32_32x32x16_bf16 {v(ACC0+16*tl,16)}, {v(BF0+16*(ks&1)+4*tl,4)}, {v(AF0+4*(ks&1),4)}, {c}')
            if tl == 0 and ks < 39:
                if (ks+1) % 4 == 0:
                    b = (ks+1)//4
                    a.wait(vm=max(wtok[WNEED[b]-1], atok[2*b+1])); a('s_barrier')
                    for r in range(2*b+4, min(2*b+6, 20)): atok[r] = a_rounds(a, r, r+1, ldflag)
                    for r in range(WISS[b-1], WISS[b]): wtok[r] = w_rounds(a, r, r+1, ldflag)
                t[ks+1] = frag_read(a, ks+1, NT)
                if extra and ks in extra: extra[ks]()
            elif side and ks >= side[0][0]:
                if side[0][1] is not None:
                    a.wait(vm=side[0][1]); side[0] = (side[0][0], None, side[0][2])
                n = 0
                while side[0][2] and n < 4:
                    op = side[0][2].pop(0); a(op); n += 1
                    if op.startswith('s_nop') or op.startswith('v_rsq') or op.startswith('v_cmp'): n -= 1
                if not side[0][2]: side.pop(0)
    assert not side
    stamp(a, 'Eend')
    for tl in range(NT):
        a(f'v_mfma_f32_32x32x16_bf16 {v(ACC0+16*tl,16)}, {v(EXW+4*tl,4)}, {v(EXT,4)}, {v(ACC0+16*tl,16)}')
    if endhook: endhook()
    else: a(f's_nop {13-NT}')
    for tl in range(NT):
        b = ACC0 + 16*tl
        G = [b+i for i in (0, 1, 2, 3, 8, 9, 10, 11)]; U = [g+4 for g in G]
        for g in G: a(f'v_mul_f32 v{g}, v{g}, v{vNRS}')
        for g in G: a(f'v_exp_f32 v{g}, v{g}')
        for g in G: a(f'v_fma_f32 v{g}, v{g}, v{vSD}, v{vSD}')
        for g in G: a(f'v_rcp_f32 v{g}, v{g}')
        for g, u in zip(G, U): a(f'v_mul_f32 v{g}, v{g}, v{u}')
        o = BF0 + 4*tl
        for i in range(4): a(f'v_cvt_pk_bf16_f32 v{o+i}, v{G[2*i]}, v{G[2*i+1]}')
        a(f'buffer_store_dwordx4 {v(o,4)}, v{A_O}, s[{SRD_WS}:{SRD_WS+3}], s{sOUT} offen offset:{512*tl} {stflag}')

def e_main(a, wtok, atok, side, ldflag, stflag, extra=None, endhook=None):
    l1 = a.newlabel('E_c1'); le = a.newlabel('E_e')
    a(f's_cmp_lg_u32 s{sCG}, 0')
    a(f's_cbranch_scc1 {l1}')
    st = (a.vm, a.lg, a.vm_done, a.lg_done); n0 = PROF['n']
    e_loop(a, 4, wtok, atok, side, ldflag, stflag, extra, endhook)
    a(f's_branch {le}')
    a.label(l1)
    a.vm, a.lg, a.vm_done, a.lg_done = st; PROF['n'] = n0
    e_loop(a, 3, wtok, atok, side, ldflag, stflag, extra, endhook)
    a.label(le)

def standalone_pe(a, end):
    e_ids(a); e_addrs(a)
    wtok = {}; atok = {}
    def W(lo, hi):
        for r in range(lo, hi): wtok[r] = w_rounds(a, r, r+1, '')
    def A(lo, hi):
        for r in range(lo, hi): atok[r] = a_rounds(a, r, r+1, '')
    A(0, 2); W(0, 4); A(2, 4); W(4, 7); A(4, 6); W(7, 14)
    ut = uv_issue(a, ''); stt = st_issue(a, '')
    e_main(a, wtok, atok, [(8, ut, uv_ops()), (14, stt, st_ops())], '', '')
```

```python
from common import *
from phase_a import silu_pk
SC = 126976

def blocks(a, nblk, nrb, first_src):
    nm = -(-nblk//8)
    for m in range(nm):
        l = None
        if 8*m + 8 > nblk:
            l = a.newlabel('H_sk')
            a(f's_cmp_ge_u32 s{sW}, {nblk - 8*m}')
            a(f's_cbranch_scc1 {l}')
        a(f's_add_u32 m0, s29, {8192*m}')
        a(f's_add_u32 s31, s31, 8')
        a(f'buffer_load_dwordx4 v2, s[{SRD_A}:{SRD_A+3}], s30 offen lds')
        if l: a.label(l)
        if m < nm-1:
            a(f's_cmp_ge_u32 s31, {nrb}')
            a(f's_cselect_b32 s32, {hx(128 - nrb*8*7680)}, 0')
            a(f's_cselect_b32 s33, {nrb}, 0')
            a(f's_sub_u32 s31, s31, s33')
            a(f's_add_u32 s30, s30, s32')
            a(f's_add_u32 s30, s30, {64*7680}')

def helper(a):
    I = 24
    srd(a, SRD_A, P_WMOD, 640*3840*2)
    srd(a, SRD_B, P_C, 1280)
    a(f'v_lshrrev_b32 v1, 3, v0')
    a(f'v_mul_u32_u24 v2, 7680, v1')
    a(f'v_bfe_u32 v1, v0, 4, 1')
    a(f's_and_b32 s28, s{sW}, 1')
    a(f's_lshl_b32 s28, s28, 1')
    a(f'v_or_b32 v1, s28, v1')
    a(f'v_lshlrev_b32 v1, 1, v1')
    a(f'v_and_b32 v3, 7, v0')
    a(f'v_xor_b32 v1, v1, v3')
    a(f'v_lshl_add_u32 v2, v1, 4, v2')
    a(f's_lshl_b32 s28, s{sW}, 7')
    a(f'v_lshl_add_u32 v4, v0, 1, s28')
    a(f'buffer_load_ushort v10, v4, s[{SRD_B}:{SRD_B+3}], 0 offen')
    ct = a.vmem(f'buffer_load_ushort v12, v4, s[{SRD_B}:{SRD_B+3}], 0 offen offset:1024')
    a(f's_and_b32 s25, s{I}, 3')
    a(f's_lshr_b32 s26, s{I}, 2')
    a(f's_mul_i32 s30, s25, {160*7680}')
    a(f's_mul_i32 s28, s26, 640')
    a(f's_add_u32 s30, s30, s28')
    a(f's_mul_i32 s28, s{sW}, {8*7680}')
    a(f's_add_u32 s30, s30, s28')
    a(f's_mov_b32 s31, s{sW}')
    a(f's_lshl_b32 s29, s{sW}, 10')
    blocks(a, 100, 20, None)
    lz = a.newlabel('H_z')
    a(f's_cmp_lt_u32 s{sW}, 6')
    a(f's_cbranch_scc1 {lz}')
    a(f's_lshl1_add_u32 s28, s{I}, s{sW}')
    a(f's_sub_u32 s28, s28, 6')
    a(f's_mul_i32 s28, s28, {48*128}')
    a(f'v_lshlrev_b32 v5, 7, v0')
    a(f'v_mov_b32 v6, 0')
    a(f's_mov_b32 exec_hi, 0xffff')
    a(f'buffer_store_dword v6, v5, s[{SRD_WS}:{SRD_WS+3}], s28 offen sc1')
    a(f's_mov_b64 exec, -1')
    a.label(lz)
    a('s_waitcnt vmcnt(12)')
    silu_pk(a, 10, 6); silu_pk(a, 12, 6)
    a(f'v_add_u32 v4, {SC}, v4')
    a(f'ds_write_b16 v4, v10')
    lc = a.newlabel('H_c')
    a(f's_cmp_ge_u32 s{sW}, 2')
    a(f's_cbranch_scc1 {lc}')
    a(f'ds_write_b16 v4, v12 offset:1024')
    a.label(lc)
    a(f'v_lshrrev_b32 v5, 4, v0')
    a(f'v_bfe_u32 v6, v0, 2, 2')
    a(f'v_lshlrev_b32 v7, 10, v5')
    a(f'v_lshl_add_u32 v7, v6, 7, v7')
    a(f'v_lshrrev_b32 v6, 1, v6')
    a(f'v_and_b32 v8, 1, v5')
    a(f'v_lshl_or_b32 v6, v8, 1, v6')
    a(f'v_lshlrev_b32 v6, 5, v6')
    a(f'v_and_b32 v8, 3, v0')
    a(f'v_lshlrev_b32 v8, 3, v8')
    a(f'v_lshlrev_b32 v5, 4, v5')
    lg = a.newlabel('H_go'); lge = a.newlabel('H_goe')
    a(f's_mov_b32 s61, 0')
    a(f's_cmp_lg_u32 s{sW}, 0')
    a(f's_cbranch_scc1 {lge}')
    a.label(lg)
    a(f's_load_dword s34, s[{P_DBG}:{P_DBG+1}], 0 glc')
    a(f's_add_u32 s61, s61, 1')
    a(f's_cmp_gt_u32 s61, {SPIN_MAX}')
    a('s_waitcnt lgkmcnt(0)')
    a(f's_cbranch_scc1 {lge}')
    a(f's_cmp_eq_u32 s34, 0')
    a(f's_cbranch_scc1 {lg}')
    a.label(lge)
    a(f's_and_b32 s28, s{sW}, 3')
    a(f's_lshl_b32 s28, s28, 5')
    a(f'v_add_u32 v9, s28, v8')
    a(f'v_xor_b32 v9, v9, v6')
    a(f'v_add_u32 v9, v9, v7')
    a(f's_lshr_b32 s28, s{sW}, 2')
    a(f's_mul_i32 s28, s28, 20480')
    a(f'v_add_u32 v9, s28, v9')
    a(f'v_add_u32 v11, 40960, v9')
    a(f's_mul_i32 s28, s25, 320')
    a(f'v_add_u32 v3, {SC}, v5')
    a(f'v_add_u32 v13, s28, v3')
    a('s_waitcnt vmcnt(0) lgkmcnt(0)')
    a('s_barrier')
    for s_ in range(5): a(f'ds_read_b128 {v(16+4*s_,4)}, v13 offset:{64*s_}')
    for m in range(3):
        for s_ in range(5):
            for h in range(2):
                base, off = (9, 0) if m == 0 else (11, (m-1)*40960)
                a(f'ds_read_b64_tr_b16 {v(48+20*m+4*s_+2*h,2)}, v{base} offset:{off+4096*s_+512*h}')
    a(f's_mul_i32 s28, s25, 5120')
    a(f's_mul_i32 s33, s26, 1280')
    a(f's_add_u32 s28, s28, s33')
    a(f's_lshl_b32 s33, s{sW}, 6')
    a(f's_add_u32 s28, s28, s33')
    a(f's_add_u32 s28, s28, {WS_MODP}')
    for m in range(3):
        a(f's_waitcnt lgkmcnt({min(15, 10*(2-m))})')
        for s_ in range(5):
            a(f'v_mfma_f32_16x16x32_bf16 {v(36+4*m,4)}, {v(48+20*m+4*s_,4)}, {v(16+4*s_,4)}, {"0" if s_ == 0 else v(36+4*m,4)}')
    a('s_nop 3')
    for r in range(12): a(f'v_or_b32 v{36+r}, 1, v{36+r}')
    a(f's_mov_b32 exec_lo, 0x00010001')
    a(f's_mov_b32 exec_hi, 0x00010001')
    for m in range(2): a(f'buffer_store_dwordx4 {v(36+4*m,4)}, v5, s[{SRD_WS}:{SRD_WS+3}], s28 offen offset:{512*m} sc1')
    lt = a.newlabel('H_t')
    a(f's_cmp_ge_u32 s{sW}, 4')
    a(f's_cbranch_scc1 {lt}')
    a(f'buffer_store_dwordx4 {v(44,4)}, v5, s[{SRD_WS}:{SRD_WS+3}], s28 offen offset:1024 sc1')
    a.label(lt)
    a(f's_mov_b64 exec, -1')
    stamp(a, 'Hpub')
    a(f's_mul_i32 s34, s{I}, 320')
    a(f's_and_b32 s35, s34, 64')
    a(f's_sub_u32 s34, s34, s35')
    a(f's_mul_i32 s28, s{sW}, {8*7680}')
    a(f's_add_u32 s34, s34, s28')
    a(f's_add_u32 s34, s34, 2560')
    for m in range(2):
        a(f's_lshl_b32 s28, s{sW}, 5')
        a(f's_add_u32 s28, s28, s35')
        if m: a(f's_add_u32 s28, s28, 256')
        a(f's_and_b32 s33, s28, 96')
        a(f'v_add_u32 v{9+2*m}, s33, v8')
        a(f'v_xor_b32 v{9+2*m}, v{9+2*m}, v6')
        a(f'v_add_u32 v{9+2*m}, v{9+2*m}, v7')
        a(f's_lshr_b32 s28, s28, 7')
        a(f's_min_u32 s28, s28, 2')
        a(f's_mul_i32 s28, s28, 40960')
        a(f'v_add_u32 v{9+2*m}, s28, v{9+2*m}')
    for p in range(2):
        a('s_barrier')
        a(f's_add_u32 s30, s34, {p*320*7680}')
        a(f's_mov_b32 s31, s{sW}')
        blocks(a, 120, 40, None)
        for s_ in range(10): a(f'ds_read_b128 {v(48+4*s_,4)}, v3 offset:{640*p+64*s_}')
        a('s_waitcnt vmcnt(0)')
        a('s_barrier')
        for m in range(2):
            for s_ in range(10):
                for h in range(2): a(f'ds_read_b64_tr_b16 {v(96+4*s_+2*h,2)}, v{9+2*m} offset:{4096*s_+512*h}')
            a('s_waitcnt lgkmcnt(0)')
            for s_ in range(10):
                a(f'v_mfma_f32_16x16x32_bf16 {v(36+4*m,4)}, {v(96+4*s_,4)}, {v(48+4*s_,4)}, {"0" if s_ == 0 and p == 0 else v(36+4*m,4)}')
    a('s_nop 7')
    round_bf16_inplace(a, list(range(36, 44)), 1)
    a(f's_cmp_eq_u32 s26, 2')
    a(f's_cselect_b32 s28, 1.0, 0')
    for r in range(36, 44): a(f'v_add_f32 v{r}, s28, v{r}')
    round_bf16_inplace(a, list(range(36, 44)), 1)
    a(f's_mul_i32 s28, s{I}, 640')
    a(f's_lshl_b32 s33, s{sW}, 6')
    a(f's_add_u32 s28, s28, s33')
    a(f's_add_u32 s28, s28, {WS_MODF}')
    a(f's_mov_b32 exec_lo, 0x00010001')
    a(f's_mov_b32 exec_hi, 0x00010001')
    a(f'buffer_store_dwordx4 {v(36,4)}, v5, s[{SRD_WS}:{SRD_WS+3}], s28 offen sc1')
    lt = a.newlabel('H_t')
    a(f's_cmp_ge_u32 s{sW}, 2')
    a(f's_cbranch_scc1 {lt}')
    a(f'buffer_store_dwordx4 {v(40,4)}, v5, s[{SRD_WS}:{SRD_WS+3}], s28 offen offset:512 sc1')
    a.label(lt)
    a(f's_mov_b64 exec, -1')
    a(f'v_lshlrev_b32 v1, 4, v0')
    a(f's_mul_i32 s28, s{sW}, 3072')
    a(f's_add_u32 s28, s28, {WS_MODP}')
    a(f's_mov_b32 s40, {WS_MODP + 20480}')
    lp = a.newlabel('H_p'); lpe = a.newlabel('H_pe')
    a(f's_mov_b32 s61, 0')
    a(f'v_add_u32 v14, s28, v1')
    a(f'v_add_u32 v15, 2048, v14')
    a(f'v_cmp_gt_u32 s[36:37], s40, v14')
    a(f'v_cmp_gt_u32 s[38:39], s40, v15')
    a.label(lp)
    for q in range(3): a(f'buffer_load_dwordx4 {v(16+4*q,4)}, v1, s[{SRD_WS}:{SRD_WS+3}], s28 offen offset:{1024*q} sc1')
    a(f's_add_u32 s61, s61, 1')
    a(f's_cmp_gt_u32 s61, {SPIN_MAX}')
    a('s_waitcnt vmcnt(0)')
    a(f's_cbranch_scc1 {lpe}')
    a(f'v_and_b32 v16, v16, v17'); a(f'v_and_b32 v18, v18, v19'); a(f'v_and_b32 v20, v20, v21'); a(f'v_and_b32 v22, v22, v23')
    a(f'v_and_b32 v24, v24, v25'); a(f'v_and_b32 v26, v26, v27')
    a(f'v_and_b32 v16, v16, v18'); a(f'v_and_b32 v20, v20, v22'); a(f'v_and_b32 v24, v24, v26')
    a(f'v_and_b32 v16, v16, v20')
    a(f'v_cndmask_b32 v16, 1, v16, s[36:37]')
    a(f'v_cndmask_b32 v24, 1, v24, s[38:39]')
    a(f'v_and_b32 v16, v16, v24')
    a(f'v_and_b32 v16, 1, v16')
    a(f'v_cmp_eq_u32 vcc, 0, v16')
    a(f's_cbranch_vccnz {lp}')
    a.label(lpe)
    a('s_barrier')
    signal(a, F_MODF, I)
```

```python
from common import *

def p_issue(a, PB, skip):
    lw = a.newlabel('P_w'); le = a.newlabel('P_ie')
    a(f's_cmpk_ge_u32 s{sWG}, 182')
    a(f's_cbranch_scc1 {skip}')
    a(f's_cmpk_ge_u32 s{sWG}, 108')
    a(f's_cbranch_scc1 {lw}')
    a(f's_mov_b32 s44, 0')
    a(f's_mul_i32 s45, s{sWG}, {(1<<16)//27+1}')
    a(f's_lshr_b32 s45, s45, 16')
    a(f's_mul_i32 s46, s45, 27')
    a(f's_sub_u32 s46, s{sWG}, s46')
    a(f's_cmp_ge_u32 s{sW}, 4')
    a(f's_cselect_b32 s{SRD_B}, s{P_WU}, s{P_WG}')
    a(f's_cselect_b32 s{SRD_B+1}, s{P_WU+1}, s{P_WG+1}')
    a(f's_mov_b32 s{SRD_B+2}, {640*1728*2}')
    a(f's_mov_b32 s{SRD_B+3}, 0x20000')
    a(f'v_lshrrev_b32 v1, 3, v0')
    a(f'v_mul_u32_u24 v10, 3456, v1')
    a(f'v_bfe_u32 v1, v0, 4, 1')
    a(f'v_lshlrev_b32 v1, 2, v1')
    a(f'v_and_b32 v11, 7, v0')
    a(f'v_xor_b32 v1, v1, v11')
    a(f'v_lshl_add_u32 v10, v1, 4, v10')
    a(f's_and_b32 s47, s{sW}, 3')
    a(f's_mul_i32 s48, s47, 40')
    a(f's_mul_i32 s49, s45, 160')
    a(f's_add_u32 s48, s48, s49')
    a(f's_mul_i32 s48, s48, 3456')
    a(f's_lshl_b32 s49, s46, 7')
    a(f's_add_u32 s48, s48, s49')
    a(f's_mul_i32 s49, s{sW}, 5120')
    for q in range(5):
        a(f's_add_u32 m0, s49, {PB + q*1024}')
        if q: a(f's_add_u32 s48, s48, {8*3456}')
        else: a('s_nop 0')
        a(f'buffer_load_dwordx4 v10, s[{SRD_B}:{SRD_B+3}], s48 offen lds')
    a(f's_branch {le}')
    a.label(lw)
    lo = a.newlabel('P_wo'); lo2 = a.newlabel('P_wo2'); lj = a.newlabel('P_j')
    a(f's_mov_b32 s44, 1')
    a(f's_cmpk_ge_u32 s{sWG}, 162')
    a(f's_cselect_b32 s{SRD_B}, s{P_WO}, s{P_WD}')
    a(f's_cselect_b32 s{SRD_B+1}, s{P_WO+1}, s{P_WD+1}')
    a(f's_mov_b32 s{SRD_B+3}, 0x20000')
    a(f's_cbranch_scc1 {lo}')
    a(f's_mov_b32 s{SRD_B+2}, {1728*640*2}')
    a(f's_sub_u32 s45, s{sWG}, 108')
    a(f's_mov_b32 s46, 27')
    a(f's_mov_b32 s47, {WS_WDP}')
    a(f's_lshl_b32 s48, s45, 5')
    a(f's_mov_b32 s50, 16'); a(f's_mov_b32 s51, 8'); a(f's_mov_b32 s52, 4')
    a(f's_branch {lj}')
    a.label(lo)
    a(f's_mov_b32 s{SRD_B+2}, {640*640*2}')
    a(f's_sub_u32 s45, s{sWG}, 162')
    a(f's_mov_b32 s46, 10')
    a(f's_mov_b32 s47, {WS_WOP}')
    a(f's_cmp_ge_u32 s45, 16')
    a(f's_cbranch_scc1 {lo2}')
    a(f's_mul_i32 s48, s45, 40')
    a(f's_mov_b32 s50, 20'); a(f's_mov_b32 s51, 4'); a(f's_mov_b32 s52, 8')
    a(f's_branch {lj}')
    a.label(lo2)
    a(f's_mul_i32 s48, s45, 160')
    a(f's_sub_u32 s48, s48, {160*16 - 16}')
    a(f's_mov_b32 s50, 80'); a(f's_mov_b32 s51, 40'); a(f's_mov_b32 s52, 20')
    a.label(lj)
    a(f's_mul_i32 s48, s48, 1280')
    a(f's_mul_i32 s49, s{sW}, 5120')
    a(f's_mul_i32 s53, s{sW}, 320')
    for q in range(5):
        a(f'v_add_u32 v1, s53, v0')
        if q: a(f'v_add_u32 v1, {64*q}, v1')
        a(f'v_mul_u32_u24 v11, 52429, v1')
        a(f'v_lshrrev_b32 v11, 22, v11')
        a(f'v_mul_u32_u24 v12, 80, v11')
        a(f'v_sub_u32 v1, v1, v12')
        a(f'v_and_b32 v12, 3, v11')
        a(f'v_lshlrev_b32 v13, 2, v12')
        a(f'v_xor_b32 v1, v1, v13')
        a(f'v_lshrrev_b32 v13, 4, v11')
        a(f'v_mad_u32_u24 v12, v13, s50, v12')
        a(f'v_bfe_u32 v13, v11, 3, 1')
        a(f'v_mad_u32_u24 v12, v13, s51, v12')
        a(f'v_bfe_u32 v13, v11, 2, 1')
        a(f'v_mad_u32_u24 v12, v13, s52, v12')
        a(f'v_mul_u32_u24 v12, 1280, v12')
        a(f's_add_u32 m0, s49, {PB + q*1024}')
        a(f'v_lshl_add_u32 v10, v1, 4, v12')
        a(f'buffer_load_dwordx4 v10, s[{SRD_B}:{SRD_B+3}], s48 offen lds')
    a.label(le)

def p_table_issue(a, ldflag):
    l = a.newlabel('P_nt')
    a(f's_cmp_lg_u32 s44, 0')
    a(f's_cbranch_scc1 {l}')
    a(f's_cmp_ge_u32 s{sW}, 2')
    a(f's_cbranch_scc1 {l}')
    a(f's_mul_i32 s48, s45, 640')
    a(f's_mul_i32 s49, s{sW}, 2560')
    a(f's_sub_u32 s48, s48, s49')
    a(f's_add_u32 s48, s48, {WS_MODP + 2560*4}')
    a(f'v_lshlrev_b32 v11, 4, v0')
    for p in range(4):
        a(f'buffer_load_dwordx4 {v(16+4*p,4)}, v11, s[{SRD_WS}:{SRD_WS+3}], s48 offen {ldflag}')
        if p < 3: a(f's_add_u32 s48, s48, 15360')
    a.label(l)

def p_compute(a, PB, TB, stflag):
    lw = a.newlabel('P_cw'); le = a.newlabel('P_ce'); l1 = a.newlabel('P_t'); l2 = a.newlabel('P_t2')
    a('s_waitcnt vmcnt(0)')
    a(f's_cmp_lg_u32 s44, 0')
    a(f's_cbranch_scc1 {lw}')
    a(f's_cmp_ge_u32 s{sW}, 2')
    a(f's_cbranch_scc1 {l1}')
    for i in range(4):
        a(f'v_add_f32 v{16+i}, v{16+i}, v{20+i}')
        a(f'v_add_f32 v{24+i}, v{24+i}, v{28+i}')
    for i in range(4): a(f'v_add_f32 v{16+i}, v{16+i}, v{24+i}')
    a(f'v_lshrrev_b32 v11, 1, v0')
    a(f'v_lshlrev_b32 v11, 6, v11')
    a(f'v_and_b32 v12, 1, v0')
    a(f's_mov_b32 exec_hi, 0xff')
    a(f's_cmp_eq_u32 s{sW}, 1')
    a(f's_cbranch_scc1 {l2}')
    round_bf16_inplace(a, [16, 17, 18, 19], 13)
    for i in range(4): a(f'v_add_f32 v{16+i}, 1.0, v{16+i}')
    round_bf16_inplace(a, [16, 17, 18, 19], 13)
    a(f'v_lshl_add_u32 v11, v12, 4, v11')
    a(f'ds_write_b128 v11, v[16:19] offset:{TB}')
    a(f's_branch {l1}')
    a.label(l2)
    a(f'v_cvt_pk_bf16_f32 v16, v16, v17')
    a(f'v_cvt_pk_bf16_f32 v17, v18, v19')
    a(f'v_lshl_add_u32 v11, v12, 3, v11')
    a(f'ds_write_b64 v11, v[16:17] offset:{TB+32}')
    a.label(l1)
    a(f's_mov_b64 exec, -1')
    a('s_waitcnt lgkmcnt(0)')
    a('s_barrier')
    a(f'v_bfe_u32 v1, v0, 2, 2')
    a(f'v_lshrrev_b32 v12, 5, v0')
    a(f'v_lshl_add_u32 v10, v12, 3, v1')
    a(f'v_lshlrev_b32 v10, 7, v10')
    a(f'v_lshrrev_b32 v1, 1, v1')
    a(f'v_lshlrev_b32 v1, 2, v1')
    a(f'v_and_b32 v11, 1, v0')
    a(f's_and_b32 s47, s{sW}, 3')
    a(f's_lshl_b32 s48, s47, 1')
    a(f'v_add_u32 v11, s48, v11')
    a(f'v_xor_b32 v1, v1, v11')
    a(f'v_lshl_add_u32 v10, v1, 4, v10')
    a(f'v_bfe_u32 v1, v0, 4, 1')
    a(f'v_lshl_add_u32 v10, v1, 3, v10')
    a(f'v_bfe_u32 v1, v0, 1, 1')
    a(f'v_mul_u32_u24 v1, 20480, v1')
    a(f's_lshr_b32 s49, s{sW}, 2')
    a(f's_mul_i32 s48, s49, {5*2048}')
    a(f's_add_u32 s48, s48, {PB}')
    a(f'v_add3_u32 v10, v10, v1, s48')
    a(f's_mul_i32 s48, s49, 640')
    a(f'v_lshl_add_u32 v11, v12, 6, s48')
    W0, G0 = 16, 36
    for q in range(5):
        for h in range(2): a(f'ds_read_b64_tr_b16 {v(W0+4*q+2*h,2)}, v10 offset:{2048*q+512*h}')
    a(f's_lshl_b32 s50, s46, 2')
    a(f's_add_u32 s50, s50, s47')
    a(f's_mul_i32 s51, s50, 40')
    a(f's_mul_i32 s52, s45, 10')
    a(f's_add_u32 s51, s51, s52')
    a(f's_mul_i32 s52, s49, 5')
    a(f's_add_u32 s51, s51, s52')
    a(f's_lshl_b32 s51, s51, 10')
    a(f's_add_u32 s51, s51, {WS_WGP}')
    a(f'v_lshlrev_b32 v13, 4, v0')
    a(f'v_mov_b32 v14, 0'); a(f'v_mov_b32 v15, 0')
    a(f's_mov_b32 s52, 0x3f803f80')
    for q in range(5):
        g = G0 + 12*(q & 1)
        for i in range(3): a(f'ds_read_b128 {v(g+4*i,4)}, v11 offset:{TB+128*q+16*i}')
        a('s_waitcnt lgkmcnt(0)')
        for m in range(4):
            w = W0 + 4*q + m
            a(f'v_dot2_f32_bf16 v15, v{w}, v{g+8+m}, v15')
            a(f'v_lshlrev_b32 v1, 16, v{w}')
            a(f'v_and_b32 v12, 0xffff0000, v{w}')
            a(f'v_mul_f32 v1, v1, v{g+2*m}')
            a(f'v_mul_f32 v12, v12, v{g+2*m+1}')
            a(f'v_cvt_pk_bf16_f32 v{w}, v1, v12')
            a(f'v_dot2_f32_bf16 v14, v{w}, s52, v14')
        if q == 4: a(f's_add_u32 s51, s51, 4096')
        a(f'buffer_store_dwordx4 {v(W0+4*q,4)}, v13, s[{SRD_WS}:{SRD_WS+3}], s51 offen offset:{1024*(q&3)} {stflag}')
    a('s_nop 2')
    a(f'v_permlane32_swap_b32 v14, v15')
    a(f'v_add_f32 v14, v14, v15')
    a(f'v_and_b32 v1, 31, v0')
    a(f'v_lshrrev_b32 v12, 5, v0')
    a(f'v_lshl_add_u32 v1, v1, 1, v12')
    a(f'v_lshlrev_b32 v1, 5, v1')
    a(f's_lshl_b32 s50, s50, 11')
    a(f's_lshl_b32 s51, s45, 3')
    a(f's_lshl_b32 s52, s49, 2')
    a(f's_add_u32 s50, s50, s51')
    a(f's_add_u32 s50, s50, s52')
    a(f's_add_u32 s50, s50, {WS_UV}')
    a(f'buffer_store_dword v14, v1, s[{SRD_WS}:{SRD_WS+3}], s50 offen {stflag}')
    a(f's_branch {le}')
    a.label(lw)
    a('s_barrier')
    a(f'v_bfe_u32 v1, v0, 2, 2')
    a(f'v_lshrrev_b32 v12, 4, v0')
    a(f'v_lshl_add_u32 v10, v12, 3, v1')
    a(f'v_mul_u32_u24 v10, 1280, v10')
    a(f'v_add_u32 v10, {PB}, v10')
    a(f'v_lshlrev_b32 v1, 6, v1')
    a(f'v_and_b32 v12, 3, v0')
    a(f's_mul_i32 s48, s{sW}, 160')
    for cu in range(5):
        if cu < 4:
            a(f'v_lshl_add_u32 v11, v12, 4, s48')
            a(f'v_add_u32 v11, {64*(cu>>1) + 8*(cu&1)}, v11')
        else:
            a(f'v_lshl_add_u32 v11, v12, 3, s48')
            a(f'v_add_u32 v11, 128, v11')
        a(f'v_xor_b32 v11, v11, v1')
        a(f'v_add_u32 v11, v11, v10')
        for h in range(2): a(f'ds_read_b64_tr_b16 {v(16+4*cu+2*h,2)}, v11 offset:{5120*h}')
    a(f's_mul_i32 s49, s{sW}, s46')
    a(f's_lshl1_add_u32 s49, s49, s45')
    a(f's_mul_i32 s49, s49, 5120')
    a(f's_add_u32 s49, s49, s47')
    a(f's_cmp_ge_u32 s45, s46')
    a(f's_cselect_b32 s50, 2048, 0')
    a(f's_add_u32 s51, s49, s50')
    a(f's_sub_u32 s52, s49, s50')
    a(f's_add_u32 s49, s49, 4096')
    a(f'v_lshlrev_b32 v13, 4, v0')
    a('s_waitcnt lgkmcnt(0)')
    for cu in range(5):
        so = ('s51', 's51', 's52', 's52', 's49')[cu]
        a(f'buffer_store_dwordx4 {v(16+4*cu,4)}, v13, s[{SRD_WS}:{SRD_WS+3}], {so} offen offset:{1024*(cu&3)} {stflag}')
    a.label(le)

def standalone_pp(a, end):
    p_issue(a, 0, end)
    p_table_issue(a, '')
    p_compute(a, 0, 40960, '')


PV0 = 224
PR0 = 200
PSEG = 8192
PTB = PSEG + 5120

def pf_setup(a):
    lw = a.newlabel('P_w'); le = a.newlabel('P_ie'); ln = a.newlabel('P_n')
    a(f's_mov_b32 s{SRD_B+3}, 0x20000')
    a(f's_cmpk_ge_u32 s{sWG}, 108')
    a(f's_cbranch_scc1 {lw}')
    a(f's_mov_b32 s44, 0')
    a(f's_mul_i32 s45, s{sWG}, {(1<<16)//27+1}')
    a(f's_lshr_b32 s45, s45, 16')
    a(f's_mul_i32 s46, s45, 27')
    a(f's_sub_u32 s46, s{sWG}, s46')
    a(f's_cmp_ge_u32 s{sW}, 4')
    a(f's_cselect_b32 s{SRD_B}, s{P_WU}, s{P_WG}')
    a(f's_cselect_b32 s{SRD_B+1}, s{P_WU+1}, s{P_WG+1}')
    a(f's_mov_b32 s{SRD_B+2}, {640*1728*2}')
    a(f'v_lshrrev_b32 v12, 3, v0')
    a(f'v_mul_u32_u24 v10, 3456, v12')
    a(f'v_bfe_u32 v12, v0, 4, 1')
    a(f'v_lshlrev_b32 v12, 2, v12')
    a(f'v_and_b32 v11, 7, v0')
    a(f'v_xor_b32 v12, v12, v11')
    a(f'v_lshl_add_u32 v{PV0}, v12, 4, v10')
    for q in range(1, 5): a(f'v_add_u32 v{PV0+q}, {q*32*3456}, v{PV0}')
    a(f's_and_b32 s48, s{sW}, 3')
    a(f's_lshl_b32 s48, s48, 3')
    a(f's_mul_i32 s49, s45, 160')
    a(f's_add_u32 s48, s48, s49')
    a(f's_mul_i32 s48, s48, 3456')
    a(f's_lshl_b32 s49, s46, 7')
    a(f's_add_u32 s48, s48, s49')
    a(f's_branch {le}')
    a.label(lw)
    lo = a.newlabel('P_wo'); lo2 = a.newlabel('P_wo2'); lj = a.newlabel('P_j')
    a(f's_mov_b32 s44, 1')
    a(f's_cmpk_ge_u32 s{sWG}, 162')
    a(f's_cselect_b32 s{SRD_B}, s{P_WO}, s{P_WD}')
    a(f's_cselect_b32 s{SRD_B+1}, s{P_WO+1}, s{P_WD+1}')
    a(f's_cbranch_scc1 {lo}')
    a(f's_mov_b32 s{SRD_B+2}, {1728*640*2}')
    a(f's_sub_u32 s45, s{sWG}, 108')
    a(f's_mov_b32 s46, 27')
    a(f's_mov_b32 s47, {WS_WDP}')
    a(f's_lshl_b32 s48, s45, 5')
    a(f's_mov_b32 s50, 16'); a(f's_mov_b32 s51, 8'); a(f's_mov_b32 s52, 4')
    a(f's_branch {lj}')
    a.label(lo)
    a(f's_mov_b32 s{SRD_B+2}, {640*640*2}')
    a(f's_sub_u32 s45, s{sWG}, 162')
    a(f's_mov_b32 s46, 10')
    a(f's_mov_b32 s47, {WS_WOP}')
    a(f's_cmp_ge_u32 s45, 20')
    a(f's_cbranch_scc1 {ln}')
    a(f's_cmp_ge_u32 s45, 16')
    a(f's_cbranch_scc1 {lo2}')
    a(f's_mul_i32 s48, s45, 40')
    a(f's_mov_b32 s50, 20'); a(f's_mov_b32 s51, 4'); a(f's_mov_b32 s52, 8')
    a(f's_branch {lj}')
    a.label(lo2)
    a(f's_mul_i32 s48, s45, 160')
    a(f's_sub_u32 s48, s48, {160*16 - 16}')
    a(f's_mov_b32 s50, 80'); a(f's_mov_b32 s51, 40'); a(f's_mov_b32 s52, 20')
    a.label(lj)
    a(f's_lshr_b32 s49, s{sW}, 2')
    a(f's_mul_i32 s49, s49, s50')
    a(f's_add_u32 s48, s48, s49')
    a(f's_bfe_u32 s49, s{sW}, 0x10001')
    a(f's_mul_i32 s49, s49, s51')
    a(f's_add_u32 s48, s48, s49')
    a(f's_and_b32 s49, s{sW}, 1')
    a(f's_mul_i32 s49, s49, s52')
    a(f's_add_u32 s48, s48, s49')
    a(f's_mul_i32 s48, s48, 1280')
    for q in range(5):
        a(f'v_add_u32 v10, {64*q}, v0')
        a(f'v_mul_u32_u24 v11, 52429, v10')
        a(f'v_lshrrev_b32 v11, 22, v11')
        a(f'v_lshlrev_b32 v12, 2, v11')
        a(f'v_mul_u32_u24 v13, 80, v11')
        a(f'v_sub_u32 v10, v10, v13')
        a(f'v_xor_b32 v10, v10, v12')
        a(f'v_add_u32 v10, v10, v13')
        a(f'v_lshlrev_b32 v{PV0+q}, 4, v10')
    a(f's_branch {le}')
    a.label(ln)
    a(f's_mov_b32 s44, 2')
    a(f's_mov_b32 s48, 0')
    for q in range(5): a(f'v_mov_b32 v{PV0+q}, 0x7f000000')
    a.label(le)

def pf_dma(a, slds):
    for q in range(5):
        a(f's_add_u32 m0, s{slds}, {PSEG + q*1024}')
        a('s_nop 0')
        a(f'buffer_load_dwordx4 v{PV0+q}, s[{SRD_B}:{SRD_B+3}], s48 offen lds')

def pf_compute(a):
    lw = a.newlabel('P_cw'); le = a.newlabel('P_ce'); l1 = a.newlabel('P_t'); l2 = a.newlabel('P_t2')
    W0, G0 = PR0, 16
    a(f'v_lshlrev_b32 v222, 4, v0')
    a(f's_cmp_lg_u32 s44, 0')
    a(f's_cbranch_scc1 {lw}')
    a(f's_cmp_ge_u32 s{sW}, 2')
    a(f's_cbranch_scc1 {l1}')
    a(f's_mul_i32 s49, s45, 640')
    a(f's_mul_i32 s50, s{sW}, 2560')
    a(f's_sub_u32 s49, s49, s50')
    a(f's_add_u32 s49, s49, {WS_MODF + 1280*4}')
    a(f'buffer_load_dwordx4 v[16:19], v222, s[{SRD_WS}:{SRD_WS+3}], s49 offen sc1')
    a(f'v_lshrrev_b32 v11, 1, v0')
    a(f'v_lshlrev_b32 v11, 6, v11')
    a(f'v_and_b32 v12, 1, v0')
    a(f's_mov_b32 exec_hi, 0xff')
    a(f's_cmp_eq_u32 s{sW}, 1')
    a('s_waitcnt vmcnt(0)')
    a(f's_cbranch_scc1 {l2}')
    a(f'v_lshl_add_u32 v11, v12, 4, v11')
    a(f'ds_write_b128 v11, v[16:19] offset:{PTB}')
    a(f's_branch {l1}')
    a.label(l2)
    a(f'v_cvt_pk_bf16_f32 v16, v16, v17')
    a(f'v_cvt_pk_bf16_f32 v17, v18, v19')
    a(f'v_lshl_add_u32 v11, v12, 3, v11')
    a(f'ds_write_b64 v11, v[16:17] offset:{PTB+32}')
    a.label(l1)
    a(f's_mov_b64 exec, -1')
    a(f'v_bfe_u32 v1, v0, 2, 2')
    a(f'v_lshrrev_b32 v12, 5, v0')
    a(f'v_lshlrev_b32 v10, 7, v1')
    a(f'v_lshrrev_b32 v1, 1, v1')
    a(f'v_lshlrev_b32 v1, 2, v1')
    a(f'v_and_b32 v11, 1, v0')
    a(f's_and_b32 s47, s{sW}, 3')
    a(f's_lshl_b32 s49, s47, 1')
    a(f'v_add_u32 v11, s49, v11')
    a(f'v_xor_b32 v1, v1, v11')
    a(f'v_lshl_add_u32 v10, v1, 4, v10')
    a(f'v_bfe_u32 v1, v0, 4, 1')
    a(f'v_lshl_add_u32 v10, v1, 3, v10')
    a(f'v_bfe_u32 v1, v0, 1, 1')
    a(f'v_lshl_add_u32 v1, v1, 2, v12')
    a(f'v_mul_u32_u24 v1, 20480, v1')
    a(f'v_add3_u32 v10, v10, v1, {0}')
    a(f's_lshr_b32 s49, s{sW}, 2')
    for q in range(5):
        o0 = ((2*q) & 3)*20480 + ((2*q) >> 2)*1024; o1 = ((10+2*q) & 3)*20480 + ((10+2*q) >> 2)*1024
        a(f's_mul_i32 s50, s49, {hx(o1-o0)}')
        a(f's_add_u32 s50, s50, {o0 + PSEG}')
        a(f'v_add_u32 v1, s50, v10')
        for h in range(2): a(f'ds_read_b64_tr_b16 {v(W0+4*q+2*h,2)}, v1 offset:{512*h}')
    a(f's_mul_i32 s50, s49, 640')
    a(f'v_lshl_add_u32 v11, v12, 6, s50')
    a(f's_lshl2_add_u32 s50, s46, s47')
    a(f's_mul_i32 s51, s50, 40')
    a(f's_mul_i32 s52, s45, 10')
    a(f's_add_u32 s51, s51, s52')
    a(f's_mul_i32 s52, s49, 5')
    a(f's_add_u32 s51, s51, s52')
    a(f's_lshl_b32 s51, s51, 10')
    a(f's_add_u32 s51, s51, {WS_WGP}')
    a(f'v_and_b32 v1, 31, v0')
    a(f'v_lshl_add_u32 v1, v1, 1, v12')
    a(f'v_lshlrev_b32 v221, 5, v1')
    a(f's_lshl_b32 s53, s50, 11')
    a(f's_lshl3_add_u32 s53, s45, s53')
    a(f's_lshl2_add_u32 s53, s49, s53')
    a(f's_add_u32 s53, s53, {WS_UV}')
    a(f's_mov_b32 s52, s51')
    a(f's_add_u32 s49, s51, 4096')
    a(f'v_mov_b32 v220, 0'); a(f'v_mov_b32 v15, 0')
    a(f's_mov_b32 s50, 0x3f803f80')
    a('s_waitcnt lgkmcnt(0)')
    a('s_barrier')
    for q in range(5):
        for i in range(3): a(f'ds_read_b128 {v(G0+12*q+4*i,4)}, v11 offset:{PTB+128*q+16*i}')
    for q in range(5):
        g = G0 + 12*q
        a(f's_waitcnt lgkmcnt({3*(4-q)})')
        for m in range(4):
            w = W0 + 4*q + m
            a(f'v_dot2_f32_bf16 v15, v{w}, v{g+8+m}, v15')
            a(f'v_lshlrev_b32 v1, 16, v{w}')
            a(f'v_and_b32 v12, 0xffff0000, v{w}')
            a(f'v_mul_f32 v1, v1, v{g+2*m}')
            a(f'v_mul_f32 v12, v12, v{g+2*m+1}')
            a(f'v_cvt_pk_bf16_f32 v{w}, v1, v12')
            a(f'v_dot2_f32_bf16 v220, v{w}, s50, v220')
    a('s_nop 2')
    a(f'v_permlane32_swap_b32 v220, v15')
    a(f'v_add_f32 v220, v220, v15')
    a(f's_branch {le}')
    a.label(lw)
    a(f'v_bfe_u32 v1, v0, 2, 2')
    a(f'v_lshrrev_b32 v12, 4, v0')
    a(f'v_mul_u32_u24 v10, 40960, v12')
    a(f'v_mul_u32_u24 v11, 1280, v1')
    a(f'v_add3_u32 v10, v10, v11, {0}')
    a(f'v_lshlrev_b32 v1, 6, v1')
    a(f'v_and_b32 v12, 3, v0')
    a(f's_mul_i32 s49, s{sW}, 160')
    for cu in range(5):
        if cu < 4:
            a(f'v_lshl_add_u32 v11, v12, 4, s49')
            a(f'v_add_u32 v11, {64*(cu>>1) + 8*(cu&1)}, v11')
        else:
            a(f'v_lshl_add_u32 v11, v12, 3, s49')
            a(f'v_add_u32 v11, 128, v11')
        a(f'v_xor_b32 v11, v11, v1')
        a(f'v_add_u32 v11, v11, v10')
        for h in range(2): a(f'ds_read_b64_tr_b16 {v(W0+4*cu+2*h,2)}, v11 offset:{PSEG + 20480*h}')
    a(f's_mul_i32 s49, s{sW}, s46')
    a(f's_lshl1_add_u32 s49, s49, s45')
    a(f's_mul_i32 s49, s49, 5120')
    a(f's_add_u32 s49, s49, s47')
    a(f's_cmp_ge_u32 s45, s46')
    a(f's_cselect_b32 s50, 2048, 0')
    a(f's_add_u32 s51, s49, s50')
    a(f's_sub_u32 s52, s49, s50')
    a(f's_add_u32 s49, s49, 4096')
    a(f's_mov_b32 s53, 0')
    a(f'v_mov_b32 v220, 0')
    a(f'v_mov_b32 v221, 0x7f000000')
    a(f's_cmp_eq_u32 s44, 2')
    a(f's_cselect_b64 vcc, -1, 0')
    a(f'v_cndmask_b32 v222, v222, v221, vcc')
    a('s_waitcnt lgkmcnt(0)')
    a.label(le)

def pf_idle(a):
    for r in (49, 51, 52, 53): a(f's_mov_b32 s{r}, 0')
    a(f'v_mov_b32 v221, 0x7f000000'); a(f'v_mov_b32 v222, 0x7f000000')

def pf_stores(a):
    for q in range(5):
        so = ('s51', 's51', 's52', 's52', 's49')[q]
        a(f'buffer_store_dwordx4 {v(PR0+4*q,4)}, v222, s[{SRD_WS}:{SRD_WS+3}], {so} offen offset:{1024*(q&3)} sc1')
    a(f'buffer_store_dword v220, v221, s[{SRD_WS}:{SRD_WS+3}], s53 offen sc1')
```

```python
import sys
from common import *
import phase_b as B, phase_h as Hh, phase_p as P, phase_c as C, phase_df as DF, phase_e as E
NAME = 'adaLN_cond__mha_block__glu_gated_glu__prompt'
HEADER = open('cdna_kernels/' + NAME + '.s.ref').read().split('; Override launch')[0]
KN = NAME + '_kernel'
OPT = dict(codepf=True, l2pf=True)

def l2_prefetch(a, base_s, per_wave, tail, tmpv):
    a(f's_lshl3_add_u32 s62, s{sY}, s{sW}')
    a(f's_mul_i32 s62, s62, {per_wave}')
    a(f's_add_u32 s62, s62, s{base_s}')
    a(f'v_lshlrev_b32 v{tmpv}, 7, v0')
    a(f'buffer_load_dword v{tmpv+1}, v{tmpv}, s[{SRD_WS}:{SRD_WS+3}], s62 offen sc1')
    a(f's_add_u32 s62, s62, 8192')
    a(f's_mov_b64 exec, {(1 << tail) - 1}')
    a(f'buffer_load_dword v{tmpv+1}, v{tmpv}, s[{SRD_WS}:{SRD_WS+3}], s62 offen sc1')
    a(f's_mov_b64 exec, -1')

def body(a):
    helper = a.newlabel('helper'); centry = a.newlabel('centry')
    if OPT['codepf']:
        l = a.newlabel('pf')
        a(f's_cmp_lg_u32 s{sW}, 1')
        a(f's_cbranch_scc1 {l}')
        a(f's_getpc_b64 s[58:59]')
        a.label(l + 'pc')
        a(f's_lshl_b32 s28, s{sY}, 11')
        a(f'v_lshl_add_u32 v1, v0, 7, s28')
        a(f'v_cmp_gt_u32 vcc, {KN}_end2-{l}pc, v1')
        a(f's_and_b32 vcc_lo, vcc_lo, 0xffff')
        a(f's_mov_b32 vcc_hi, 0')
        a(f's_and_saveexec_b64 s[60:61], vcc')
        a(f's_cbranch_execz {l}x')
        a(f'global_load_dword v253, v1, s[58:59]')
        a.vm -= 1
        a.label(l + 'x')
        a(f's_mov_b64 exec, -1')
        a.label(l)
    B.b_ids(a, helper)
    B.phase_b_fused(a)
    a(f's_lshl4_add_u32 s56, s{B.sNT}, s{B.sMT}')
    a(f'v_and_b32 v10, 15, v0')
    a(f'v_lshlrev_b32 v10, 7, v10')
    a(f's_mov_b32 s57, {flag_off(F_MODF)}')
    poll(a, [(10, 's57', 11)])
    a('s_waitcnt vmcnt(0)')
    a('s_barrier')
    stamp(a, 'Bsig')
    signal(a, F_QKV, 56)
    P.pf_compute(a)
    a(f's_branch {centry}')
    a.label(helper)
    n0 = PROF['n']; PROF['n'] = 1
    Hh.helper(a)
    PROF['n'] = n0
    P.pf_idle(a)
    a.label(centry)
    C.c_ids(a)
    a(f's_mul_i32 s32, s{C.sHD}, 20')
    a(f's_add_u32 s33, s32, 19')
    a(f's_lshr_b32 s32, s32, 7')
    a(f's_lshr_b32 s33, s33, 7')
    a(f's_sub_u32 s33, s33, s32')
    a(f'v_bfe_u32 v1, v0, 4, 1')
    a(f'v_mul_u32_u24 v1, s33, v1')
    a(f'v_lshrrev_b32 v10, 5, v0')
    a(f'v_mul_u32_u24 v10, 5, v10')
    a(f'v_add3_u32 v10, v10, v1, s32')
    a(f'v_add_u32 v10, 5, v10')
    a(f'v_and_b32 v1, 15, v0')
    a(f'v_lshl_add_u32 v10, v10, 4, v1')
    a(f'v_lshlrev_b32 v10, 7, v10')
    a(f'v_and_b32 v1, 1, v0')
    a(f'v_mul_u32_u24 v1, s33, v1')
    a(f'v_add_u32 v1, s32, v1')
    a(f'v_bfe_u32 v11, v0, 1, 1')
    a(f'v_lshl_add_u32 v11, v1, 4, v11')
    a(f's_lshl_b32 s32, s{C.sQB}, 1')
    a(f'v_add_lshl_u32 v11, v11, s32, 7')
    a(f's_mov_b32 s57, {flag_off(F_QKV)}')
    poll(a, [(10, 's57', 12), (11, 's57', 13)])
    a('s_barrier')
    stamp(a, 'Cgo0')
    a(f's_lshl1_add_u32 s58, s{C.sQB}, s{C.sKH}')
    a(f's_mul_i32 s58, s58, 51200')
    a(f's_lshl_b32 s62, s{C.sQP}, 10')
    a(f's_add_u32 s58, s58, s62')
    a(f's_add_u32 s58, s58, {WS_WOP}')
    a(f's_mul_i32 s59, s{C.sKH}, 81920')
    a(f's_add_u32 s59, s59, s62')
    a(f'v_lshlrev_b32 v193, 7, v0')
    lab = {k: a.newlabel('Ch' + k) for k in ('pre', 'prer', 'post', 'postr')}
    def hook(kind):
        if kind == 'pre':
            a(f's_cmp_eq_u32 s{C.sIT}, 2'); a(f's_cbranch_scc1 {lab["pre"]}'); a.label(lab['prer'])
        elif kind == 'post':
            a(f's_cmp_lg_u32 s{C.sIT}, 1'); a(f's_cbranch_scc1 {lab["post"]}'); a.label(lab['postr'])
        else:
            st = (a.vm, a.lg, a.vm_done, a.lg_done)
            a.label(lab['pre'])
            a(f's_cmp_ge_u32 s{sW}, 4'); a(f's_cbranch_scc1 {lab["prer"]}')
            lp = a.newlabel('Chp')
            a(f's_mov_b32 s61, 0')
            a.label(lp)
            a(f'v_cmp_ne_u32 vcc, 1, v194')
            a(f's_add_u32 s61, s61, 1')
            a(f's_cbranch_vccz {lab["prer"]}')
            a(f's_cmp_gt_u32 s61, {SPIN_MAX}'); a(f's_cbranch_scc1 {lab["prer"]}')
            a(f'buffer_load_dword v194, v193, s[{SRD_WS}:{SRD_WS+3}], s57 offen sc1')
            a('s_waitcnt vmcnt(0)')
            a(f's_branch {lp}')
            a.label(lab['post'])
            l3 = a.newlabel('Ch3'); l2 = a.newlabel('Ch2')
            a(f's_cmp_eq_u32 s{C.sIT}, 3'); a(f's_cbranch_scc1 {l3}')
            a(f's_cmp_eq_u32 s{C.sIT}, 2'); a(f's_cbranch_scc1 {l2}')
            signal(a, F_PACK, sWG)
            a(f's_branch {lab["postr"]}')
            a.label(l3)
            a(f's_and_b32 s57, s{sW}, 3')
            a(f's_lshl_b32 s57, s57, 13')
            a(f's_add_u32 s57, s57, {flag_off(F_PACK)}')
            a(f'buffer_load_dword v194, v193, s[{SRD_WS}:{SRD_WS+3}], s57 offen sc1')
            a(f's_branch {lab["postr"]}')
            a.label(l2)
            DF.w_rounds(a, 0, 10, 'sc1', 58, 59)
            if OPT['l2pf']:
                a(f's_and_b32 s60, s{sX}, 1')
                a(f's_mul_i32 s60, s60, {53*40960}')
                a(f's_add_u32 s60, s60, {WS_WGP}')
                l2_prefetch(a, 60, 8832, 5, 195)
            a(f's_branch {lab["postr"]}')
            a.vm, a.lg, a.vm_done, a.lg_done = st
    def after0():
        a('s_barrier')
        P.pf_stores(a)
    C.phase_c(a, 'sc1', 'sc1', SCR=(40960, 81920, 53248), hook=hook, after0=after0, ids=False)
    otok = a.vm
    a(f's_lshl_b32 s56, s{C.sQB}, 5')
    a(f's_add_u32 s56, s56, s{C.sHD}')
    DF.df_ids(a, False)
    DF.df_addrs(a, False, 'sc1', True)
    a(f'v_and_b32 v10, 31, v0')
    a(f'v_lshlrev_b32 v10, 7, v10')
    a(f's_lshl_b32 s57, s{sX}, 12')
    a(f's_add_u32 s57, s57, {flag_off(F_ATT)}')
    a.vm_done = 0
    a.wait(vm=otok)
    a('s_barrier')
    stamp(a, 'Csig')
    signal(a, F_ATT, 56)
    DF.w_rounds(a, 10, 13, 'sc1')
    poll(a, [(10, 's57', 11)])
    a('s_waitcnt vmcnt(0)')
    a('s_barrier')
    atok = {}
    DF.a_loads(a, 0, 10, 'sc1', atok)
    PROF['fused'] = True
    DF.df_loop(a, False, atok, {}, 'sc1', 'sc1', set(), head=False, scr=(135168, 12288))
    dtok = a.vm
    a(f's_lshl2_add_u32 s56, s{sX}, s{DF.sRT}')
    a(f's_lshl3_add_u32 s56, s56, s{DF.sCT}')
    E.e_ids(a)
    wtok = {}; atok = {}
    for r in range(14): wtok[r] = E.w_rounds(a, r, r+1, 'sc1')
    E.e_addrs(a)
    ut = E.uv_issue(a, 'sc1')
    a(f'v_and_b32 v10, 15, v0')
    a(f'v_lshlrev_b32 v10, 7, v10')
    a(f's_lshl_b32 s57, s{E.sRB}, 11')
    a(f's_add_u32 s57, s57, {flag_off(F_D)}')
    a.wait(vm=dtok)
    a('s_barrier')
    stamp(a, 'Dsig')
    signal(a, F_D, 56)
    a.wait(vm=ut)
    for op in E.uv_ops(): a(op)
    poll(a, [(10, 's57', 13)])
    a('s_barrier')
    for r in range(2): atok[r] = E.a_rounds(a, r, r+1, 'sc1')
    a('s_barrier')
    for r in range(2, 6): atok[r] = E.a_rounds(a, r, r+1, 'sc1')
    stt = E.st_issue(a, 'sc1')
    def pfwd():
        a(f's_mov_b32 s60, {WS_WDP}')
        l2_prefetch(a, 60, 8704, 4, 240)
    def endhook():
        a(f's_lshl4_add_u32 s56, s{E.sRB}, s{E.sFS}')
        a('s_barrier')
        DF.df_ids(a, True)
        DF.w_rounds(a, 0, 20, 'sc1')
    E.e_main(a, wtok, atok, [(8, stt, E.st_ops())], 'sc1', 'sc1', {4: pfwd} if OPT['l2pf'] else None, endhook)
    etok = a.vm
    a.vm_done = 0
    DF.df_addrs(a, True, 'sc1', True)
    a(f'v_and_b32 v10, 15, v0')
    a(f'v_lshlrev_b32 v10, 7, v10')
    a(f's_lshr_b32 s57, s{DF.sRT}, 1')
    a(f's_lshl1_add_u32 s57, s{sX}, s57')
    a(f's_lshl_b32 s57, s57, 11')
    a(f's_add_u32 s57, s57, {flag_off(F_E)}')
    a.wait(vm=etok)
    a('s_barrier')
    stamp(a, 'Esig')
    signal(a, F_E, 56)
    poll(a, [(10, 's57', 11)])
    a('s_barrier')
    atok = {}
    DF.a_loads(a, 0, 2, 'sc1', atok)
    a('s_barrier')
    DF.a_loads(a, 2, 8, 'sc1', atok)
    def feed(j):
        if j + 8 < 27: DF.a_loads(a, j+8, j+9, 'sc1', atok)
    DF.df_loop(a, True, atok, {}, 'sc1', 'sc1', set(range(1, 7)), head=False, feed=feed)

def build(prof=None, stamps=None):
    PROF['on'] = bool(prof); PROF['clock'] = prof; PROF['n'] = 0; PROF['only'] = stamps; PROF['names'] = []
    a = Asm()
    prologue(a, KN + '_end2')
    stamp(a, 'start')
    body(a)
    if PROF['on']: a('s_waitcnt vmcnt(0)')
    stamp(a, 'end')
    stamp_flush(a, 0)
    a.label(KN + '_end2')
    a('s_endpgm')
    probs = check(a.lines, trans_states=2)
    if probs: print(len(probs), 'hazards')
    out = HEADER + '; @launch grid=(256,1,1) block=(512,1,1) lds=163840\n.amdgcn_target "amdgcn-amd-amdhsa--gfx950"\n.text\n'
    out += f'.globl {KN}\n.p2align 8\n.type {KN},@function\n{KN}:\n' + a.text() + descriptor(KN)
    return out

if __name__ == '__main__':
    prof = sys.argv[2] if len(sys.argv) > 2 else None
    stamps = sys.argv[3].split(',') if len(sys.argv) > 3 else None
    open(sys.argv[1], 'w').write(build(prof, stamps))
```
